```python
import torch

def _softmax(x, axis=-1):
    return torch.softmax(x, dim=axis)
def _gelu(x):
    return torch.nn.functional.gelu(x, approximate="tanh")
def _silu(x):
    return torch.nn.functional.silu(x)
def _sigmoid(x):
    return torch.sigmoid(x)
def _layernorm(x, axis=-1, eps=1e-5):
    m = x.mean(dim=axis, keepdim=True)
    v = x.var(dim=axis, keepdim=True, unbiased=False)
    return (x - m) / torch.sqrt(v + eps)
def _scatter_add(tgt, idx, src, axis=0):
    return tgt.clone().index_add_(axis, idx, src)
def _segment_sum(src, seg, n):
    out = torch.zeros((n,) + src.shape[1:], dtype=src.dtype)
    return out.index_add_(0, seg, src)
def _pad(x, pw):
    flat = tuple(v for pair in reversed(pw) for v in pair)
    return torch.nn.functional.pad(x, flat)

kernel_name = 'standalone__grouped_kv_mqa__prompt'

def setup_inputs():

    _w = (lambda a: (lambda t: t.to(torch.bfloat16) if t.is_floating_point() else t)(torch.as_tensor(a)))
    B, S, D, H = 1, 2048, 1024, 32
    Dh = D // H
    return {
        "x": _w((lambda *s: torch.randn(*s, dtype=torch.bfloat16) * 0.05)(B, S, D)),
        "wq": _w((lambda *s: torch.randn(*s, dtype=torch.bfloat16) * 0.8)(D, H * Dh)),
        "wk": _w((lambda *s: torch.randn(*s, dtype=torch.bfloat16) * 0.8)(D, Dh)),
        "wv": _w((lambda *s: torch.randn(*s, dtype=torch.bfloat16) * 0.05)(D, Dh)),
        "wo": _w((lambda *s: torch.randn(*s, dtype=torch.bfloat16) * 0.05)(H * Dh, D)),
    }

def reference(x, wq, wk, wv, wo):
    B, S, D = x.shape
    H = 32
    Dh = D // H
    q = (lambda x, *d: x.permute(*d))((x @ wq).reshape(B, S, H, Dh), 0, 2, 1, 3)
    k = x @ wk
    v = x @ wv
    scores = torch.einsum("bhqd,bkd->bhqk", q, k) * (Dh ** -0.5)
    p = _softmax(scores, axis=-1)
    o = torch.einsum("bhqk,bkd->bhqd", p, v)
    return (lambda x, *d: x.permute(*d))(o, 0, 2, 1, 3).reshape(B, S, H * Dh) @ wo
```

```python
import sys, math, struct

NAME = "standalone__grouped_kv_mqa__prompt"

class Cfg:
    stamps = 0
    look = 2
    force_fb = 0
    force_slow = 0
    kvrate = 3
    gateA = 7
    gateAchk = 10
    gateB = 7
    gateBchk = 12
    rot = 1

def f2u(x):
    return struct.unpack("<I", struct.pack("<f", x))[0]

def vr(a, n=1, k="v"):
    return f"{k}{a}" if n == 1 else f"{k}[{a}:{a+n-1}]"
def ar(a, n=1):
    return vr(a, n, "a")
def sr(a, n=1):
    return vr(a, n, "s")

SX, SWQ, SWKV, SWO, SOUT, SDBG, SKV, SO = 4, 8, 12, 16, 20, 24, 28, 32
sTB, sHP, sW, sROT = 36, 37, 38, 39
sT0, sT1, sT2, sT3 = 40, 41, 42, 43
sUNSAFE, sSPIN = 44, 45
sEX = 46
sPTR = 48
sMX, sMW = 64, 65
sKVEC = 66
sKVOFF = 67
sWO0 = 68
sLOOP = 69
sSTAMP = 72

vL = 0
vT = 1
VX = 8
VW = 12
VKX = 14
VKW = 16
VKRX = 17
VKRW = 19
VREDW, VREDR, VKVST = 21, 22, 23
VRX = 24
VRW = 30
VQW, VL16 = 36, 37
VPOLL = 38
VPOLLA = 39
ONES, IDX = 40, 44
VQR = 45
VRCP = 46
S0 = 48
ACCO = (96, 112)
ACCL = (128, 132)
Q0 = 136
VXW, VXR, VWO, VOST, VGATE, VOW, VOR, VOUT = 8, 9, 10, 11, 12, 13, 14, 15
VTR = 16
VPK = 24
XF = 192
WF = 160
QACC = 48
KVACC = 80
REDT = 224

SLOT = 24576
L_RED = 147456
L_Q = 147456
L_XFER = (106496, 131072)
XSLOT = 5120
L_STAGE = 131072
WS_O = 1 << 20
WS_STAMP = 8 << 20
SPIN_MAX = 1 << 20


class Gen:
    def __init__(self, cfg):
        self.c = cfg
        self.out = []
        self.tail = []
        self.vm = []; self.vmdone = 0
        self.lg = []; self.lgdone = 0
        self.nstamp = 0
        self.stampnames = []
        self.uid = 0

    def e(self, s):
        self.out.append("    " + s)
    def lab(self, s):
        self.out.append(s + ":")
    def cm(self, s):
        self.out.append("    ; " + s)
    def newlab(self, p):
        self.uid += 1
        return f"L_{p}{self.uid}"
    def vmem(self, s, tag=None):
        self.e(s); self.vm.append(tag)
    def lds(self, s, tag=None):
        self.e(s); self.lg.append(tag)
    def _need(self, lst, done, tag, cap):
        idx = [i for i, t in enumerate(lst) if t == tag]
        assert idx, f"no op tagged {tag}"
        last = idx[-1]
        if last < done:
            return None, done
        n = min(len(lst) - 1 - last, cap)
        return n, len(lst) - n
    def wait(self, vm=None, lg=None):
        parts = []
        if vm is not None:
            if vm == "all":
                parts.append("vmcnt(0)"); self.vmdone = len(self.vm)
            else:
                n, self.vmdone = self._need(self.vm, self.vmdone, vm, 63)
                if n is not None: parts.append(f"vmcnt({n})")
        if lg is not None:
            if lg == "all":
                parts.append("lgkmcnt(0)"); self.lgdone = len(self.lg)
            else:
                n, self.lgdone = self._need(self.lg, self.lgdone, lg, 15)
                if n is not None: parts.append(f"lgkmcnt({n})")
        if parts:
            self.e("s_waitcnt " + " ".join(parts))
    def stamp(self, name):
        if self.c.stamps:
            r = sSTAMP + 2 * self.nstamp
            assert r + 1 < 102
            self.e(f"s_memrealtime {sr(r,2)}")
            self.nstamp += 1
            self.stampnames.append(name)
    def srd(self, s, ptr, off, nbytes):
        if off is None:
            self.e(f"s_mov_b32 s{s}, s{ptr}")
            self.e(f"s_mov_b32 s{s+1}, s{ptr+1}")
        else:
            self.e(f"s_add_u32 s{s}, s{ptr}, {off}")
            self.e(f"s_addc_u32 s{s+1}, s{ptr+1}, 0")
        self.e(f"s_mov_b32 s{s+2}, {nbytes}")
        self.e(f"s_mov_b32 s{s+3}, 0x20000")

    def prologue(self):
        e = self.e
        e("s_cmp_ge_u32 s2, 256")
        e("s_cbranch_scc1 L_end")
        self.stamp("start")
        e(f"s_load_dwordx16 {sr(sPTR,16)}, s[0:1], 0")
        e(f"v_lshrrev_b32 v1, 6, v0")
        e(f"v_and_b32 v{vL}, 63, v0")
        e(f"v_readfirstlane_b32 s{sW}, v1")
        e(f"s_and_b32 s{sT0}, s2, 7")
        e(f"s_bfe_u32 s{sT1}, s2, 0x10003")
        e(f"s_lshl1_add_u32 s{sTB}, s{sT0}, s{sT1}")
        e(f"s_lshr_b32 s{sHP}, s2, 4")
        if self.c.rot:
            e(f"s_lshl3_add_u32 s{sROT}, s{sT1}, s{sT0}")
            e(f"s_add_u32 s{sROT}, s{sROT}, s{sHP}")
        else:
            e(f"s_mov_b32 s{sROT}, 0")
        e(f"v_lshrrev_b32 v2, 3, v{vL}")
        e(f"v_lshrrev_b32 v3, 4, v{vL}")
        e(f"v_and_b32 v4, 7, v{vL}")
        e(f"v_xor_b32 v5, v4, v3")
        e(f"v_lshlrev_b32 v5, 4, v5")
        e(f"v_lshl_add_u32 v{VKX}, v2, 11, v5")
        e(f"v_xor_b32 v5, 64, v{VKX}")
        e(f"v_add_u32 v{VKX+1}, {8*2048-1024}, v5")
        e(f"v_lshrrev_b32 v5, 5, v{vL}")
        e(f"v_lshlrev_b32 v5, 1, v5")
        e(f"v_xor_b32 v5, v5, v{vL}")
        e(f"v_lshlrev_b32 v{VKW}, 4, v5")
        e(f"v_and_b32 v5, 1, v3")
        e(f"v_lshlrev_b32 v5, 1, v5")
        e(f"v_xor_b32 v5, v5, v4")
        e(f"v_lshlrev_b32 v5, 4, v5")
        e(f"v_lshl_add_u32 v5, v2, 11, v5")
        e(f"s_lshl_b32 s{sT2}, s{sW}, 15")
        e(f"v_add_u32 v{VW}, s{sT2}, v5")
        e(f"v_xor_b32 v5, 64, v{VW}")
        e(f"v_add_u32 v{VW+1}, {8*2048-1024}, v5")
        e(f"s_lshr_b32 s{sT2}, s{sHP}, 1")
        e(f"s_lshl_b32 s{sT2}, s{sT2}, 15")
        e(f"s_lshl_b32 s{sT3}, s{sW}, 9")
        e(f"s_add_u32 s{sT2}, s{sT2}, s{sT3}")
        e(f"s_mul_i32 s{sT3}, s{sW}, {SLOT}")
        e(f"s_lshl_b32 s{sT0}, s{sTB}, 18")
        e(f"s_lshl_b32 s{sT1}, s{sHP}, 7")
        e(f"s_lshl_b32 s{sMX}, s{sW}, 12")
        e(f"s_lshl_b32 s{sMW}, s{sW}, 11")
        e(f"s_add_u32 s{sMW}, s{sMW}, 16384")
        e(f"s_mov_b32 m0, s{sT3}")
        e("s_waitcnt lgkmcnt(0)")
        self.srd(SX, sPTR + 0, f"s{sT0}", 0x40000)
        for kc in range(4):
            if kc:
                e(f"s_add_u32 m0, s{sT3}, {kc*2048}")
                e(f"s_add_u32 s{sT2}, s{sT2}, 128")
            self.vmem(f"buffer_load_dwordx4 v{VKX}, {sr(SX,4)}, s{sT2} offen lds", "kvx")
            self.vmem(f"buffer_load_dwordx4 v{VKX+1}, {sr(SX,4)}, s{sT2} offen offset:1024 lds", "kvx")
        e(f"s_sub_u32 s{sT2}, 0x200000, s{sT1}")
        self.srd(SWQ, sPTR + 2, f"s{sT1}", f"s{sT2}")
        self.q_dma_w(0)
        e(f"s_bitcmp1_b32 s{sHP}, 0")
        e(f"s_cselect_b32 s{SWKV}, s{sPTR+6}, s{sPTR+4}")
        e(f"s_cselect_b32 s{SWKV+1}, s{sPTR+7}, s{sPTR+5}")
        e(f"s_cselect_b32 s{sKVEC}, 1.0, {hex(f2u(math.log2(math.e)/math.sqrt(32.0)))}")
        e(f"s_mov_b32 s{SWKV+2}, 0x10000")
        e(f"s_mov_b32 s{SWKV+3}, 0x20000")
        e(f"s_lshl_b32 s{sT2}, s{sW}, 14")
        for i4 in range(4):
            e(f"s_add_u32 m0, s{sT3}, {8192 + i4*4096}")
            if i4: e(f"s_add_u32 s{sT2}, s{sT2}, 4096")
            else: e("s_nop 0")
            for j in range(4):
                self.vmem(f"buffer_load_dwordx4 v{VKW}, {sr(SWKV,4)}, s{sT2} offen offset:{j*1024} lds", f"kvw{i4}")
        e(f"s_lshl_b32 s{sT2}, s{sW}, 16")
        e(f"v_add_u32 v{VX}, s{sT2}, v{VKX}")
        e(f"v_add_u32 v{VX+1}, s{sT2}, v{VKX+1}")
        e(f"v_add_u32 v{VX+2}, {16*2048-2048}, v{VX}")
        e(f"v_add_u32 v{VX+3}, {16*2048-2048}, v{VX+1}")
        self.q_dma_x(0)
        self.q_dma_x(1)
        self.q_dma_w(1)
        self.stamp("issued")
        e(f"s_lshl_b32 s{sT0}, s{sTB}, 18")
        e(f"s_lshl_b32 s{sT1}, s{sHP}, 7")
        e(f"s_sub_u32 s{sT2}, 0x200000, s{sT1}")
        self.srd(SWO, sPTR + 8, f"s{sT1}", f"s{sT2}")
        e(f"s_sub_u32 s{sT2}, 0x40000, s{sT1}")
        e(f"s_add_u32 s{sT1}, s{sT1}, s{sT0}")
        self.srd(SOUT, sPTR + 10, f"s{sT1}", f"s{sT2}")
        self.srd(SDBG, sPTR + 12, None, 256)
        self.srd(SKV, sPTR + 14, None, 0x40000)
        e(f"s_add_u32 s{sT0}, s{sT0}, {WS_O}")
        self.srd(SO, sPTR + 14, f"s{sT0}", 0x40000)
        e(f"s_lshl_b32 s{sKVOFF}, s{sW}, 16")
        e(f"s_lshl_b32 s{sWO0}, s{sW}, 10")
        e(f"v_and_b32 v5, 15, v{vL}")
        e(f"v_lshlrev_b32 v{VL16}, 4, v{vL}")
        e(f"v_lshrrev_b32 v6, 1, v5")
        e(f"v_xor_b32 v6, v6, v3")
        e(f"v_lshlrev_b32 v6, 4, v6")
        e(f"v_lshl_add_u32 v6, v5, 7, v6")
        e(f"v_add_u32 v{VKRX}, s{sT3}, v6")
        e(f"v_xor_b32 v{VKRX+1}, 64, v{VKRX}")
        e(f"s_lshr_b32 s{sT0}, s{sW}, 1")
        e(f"s_lshl_b32 s{sT0}, s{sT0}, 13")
        e(f"v_add_u32 v{VRX}, s{sT0}, v6")
        e(f"v_xor_b32 v{VRX+3}, 64, v{VRX}")
        for kk in range(2):
            for win in (1, 2):
                e(f"v_add_u32 v{VRX+3*kk+win}, {win*2*SLOT}, v{VRX+3*kk}")
        e(f"v_lshrrev_b32 v6, 2, v5")
        e(f"v_and_b32 v7, 3, v5")
        e(f"v_lshl_add_u32 v1, v3, 3, v6")
        e(f"v_and_b32 v2, 1, v3")
        e(f"v_lshlrev_b32 v4, 5, v2")
        e(f"v_lshl_add_u32 v4, v7, 3, v4")
        e(f"v_lshl_add_u32 v4, v1, 6, v4")
        e(f"s_add_u32 s{sT0}, s{sT3}, 8192")
        e(f"v_add_u32 v{VKRW}, s{sT0}, v4")
        e(f"v_xor_b32 v{VKRW+1}, 32, v{VKRW}")
        e(f"v_lshrrev_b32 v4, 3, v5")
        e(f"v_lshl_or_b32 v4, v2, 1, v4")
        e(f"s_and_b32 s{sT0}, s{sW}, 1")
        e(f"s_lshl_b32 s{sT0}, s{sT0}, 1")
        e(f"v_xor_b32 v4, s{sT0}, v4")
        e(f"v_lshlrev_b32 v4, 5, v4")
        e(f"v_lshl_add_u32 v4, v7, 3, v4")
        e(f"v_lshl_add_u32 v4, v1, 7, v4")
        e(f"v_add_u32 v{VRW}, 16384, v4")
        e(f"v_xor_b32 v{VRW+3}, 32, v{VRW}")
        for c2 in range(2):
            for win in (1, 2):
                e(f"v_add_u32 v{VRW+3*c2+win}, {win*2*SLOT}, v{VRW+3*c2}")
        e(f"s_lshl_b32 s{sT0}, s{sW}, 11")
        e(f"s_add_u32 s{sT0}, s{sT0}, {L_RED}")
        e(f"v_add_u32 v{VREDW}, s{sT0}, v{VL16}")
        e(f"v_lshrrev_b32 v4, 5, v{vL}")
        e(f"v_lshl_add_u32 v4, v4, 5, v5")
        e(f"v_lshlrev_b32 v4, 4, v4")
        e(f"v_lshl_add_u32 v1, v2, 10, v4")
        e(f"v_add_u32 v{VREDR}, {L_RED}, v1")
        e(f"s_lshr_b32 s{sT0}, s{sHP}, 2")
        e(f"s_lshl2_add_u32 s{sT0}, s{sTB}, s{sT0}")
        e(f"s_lshl_b32 s{sT0}, s{sT0}, 12")
        e(f"s_bfe_u32 s{sT1}, s{sHP}, 0x10001")
        e(f"s_lshl_b32 s{sT2}, s{sT1}, 8")
        e(f"s_lshl_b32 s{sT1}, s{sT1}, 10")
        e(f"s_add_u32 s{sT1}, s{sT1}, 2048")
        e(f"s_bitcmp1_b32 s{sHP}, 0")
        e(f"s_cselect_b32 s{sT1}, s{sT1}, s{sT2}")
        e(f"s_cselect_b64 vcc, -1, 0")
        e(f"s_add_u32 s{sT0}, s{sT0}, s{sT1}")
        e(f"v_cndmask_b32 v1, v1, v{VL16}, vcc")
        e(f"v_add_u32 v{VKVST}, s{sT0}, v1")
        e(f"s_and_b32 s{sT0}, s{sW}, 1")
        e(f"s_lshl_b32 s{sT0}, s{sT0}, 13")
        e(f"s_lshr_b32 s{sT1}, s{sW}, 1")
        e(f"s_lshl_b32 s{sT1}, s{sT1}, 12")
        e(f"s_add_u32 s{sT0}, s{sT0}, s{sT1}")
        e(f"s_add_u32 s{sT0}, s{sT0}, {L_Q}")
        e(f"v_lshl_add_u32 v4, v2, 3, v4")
        e(f"v_add_u32 v{VQW}, s{sT0}, v4")
        e(f"v_and_b32 v1, 3, v{vL}")
        e(f"v_lshlrev_b32 v{VPOLLA}, 6, v1")
        e(f"v_and_b32 v1, 7, v{vL}")
        e(f"v_mov_b32 v4, 0x3f803f80")
        e(f"v_cmp_eq_u32 vcc, 0, v1")
        e(f"v_mov_b32 v{IDX}, 0xdddddddd")
        e(f"s_nop 0")
        e(f"v_cndmask_b32 v{ONES}, 0, v4, vcc")
        e(f"v_cndmask_b32 v{ONES+1}, 0, v4, vcc")
        e(f"v_cmp_eq_u32 vcc, 4, v1")
        e(f"s_nop 1")
        e(f"v_cndmask_b32 v{ONES+2}, 0, v4, vcc")
        e(f"v_cndmask_b32 v{ONES+3}, 0, v4, vcc")
        for r in range(ACCO[0], ACCL[1] + 4):
            e(f"v_mov_b32 v{r}, 0")

    @staticmethod
    def slot_of(st):
        return (st + 4) % 6

    def q_dma_ops(self, st, part):
        e = self.e
        base = self.slot_of(st) * SLOT
        ops = []
        if part == "x":
            def pre():
                e(f"s_add_u32 s{sT0}, s{sROT}, {st}")
                e(f"s_and_b32 s{sT0}, s{sT0}, 15")
                e(f"s_add_u32 m0, s{sMX}, {base}")
                e(f"s_lshl_b32 s{sT0}, s{sT0}, 7")
            ops.append(pre)
            for j in range(4):
                ops.append(lambda j=j: self.vmem(f"buffer_load_dwordx4 v{VX+j}, {sr(SX,4)}, s{sT0} offen offset:{j*1024} lds", f"q{st}"))
        else:
            def pre():
                e(f"s_add_u32 s{sT0}, s{sROT}, {st}")
                e(f"s_and_b32 s{sT0}, s{sT0}, 15")
                e(f"s_add_u32 m0, s{sMW}, {base}")
                e(f"s_lshl_b32 s{sT0}, s{sT0}, 17")
            ops.append(pre)
            for j in range(2):
                ops.append(lambda j=j: self.vmem(f"buffer_load_dwordx4 v{VW+j}, {sr(SWQ,4)}, s{sT0} offen offset:{j*1024} lds", f"q{st}"))
        return ops
    def q_dma_x(self, st):
        for f in self.q_dma_ops(st, "x"): f()
    def q_dma_w(self, st):
        for f in self.q_dma_ops(st, "w"): f()

    def kv_proj(self):
        e = self.e
        self.cm("---- K/V projection: 16 tokens x 32 columns, k split over the waves")
        self.wait(vm="kvx")
        self.stamp("kvx")
        for ks in range(8):
            self.lds(f"ds_read_b128 {ar(4*ks,4)}, v{VKRX+(ks&1)} offset:{(ks>>1)*2048}", f"kx{ks}")
        for ks in range(8):
            if ks % 2 == 0: self.wait(vm=f"kvw{ks//2}")
            for T in range(2):
                for h in range(2):
                    self.lds(f"ds_read_b64_tr_b16 {ar(32+8*ks+4*T+2*h,2)}, v{VKRW+T} offset:{ks*2048+h*256}", f"kw{ks}")
        self.stamp("kvw")
        lv, lj = self.newlab("kvV"), self.newlab("kvj")
        e(f"s_bitcmp1_b32 s{sHP}, 0")
        e(f"s_cbranch_scc1 {lv}")
        save = (self.lgdone)
        for isv in range(2):
            self.lgdone = save
            if isv: self.lab(lv)
            for ks in range(8):
                self.wait(lg=f"kw{ks}")
                for T in range(2):
                    w, x = ar(32+8*ks+4*T, 4), ar(4*ks, 4)
                    a, b = (x, w) if isv else (w, x)
                    d = vr(KVACC+4*T, 4)
                    e(f"v_mfma_f32_16x16x32_bf16 {d}, {a}, {b}, {d if ks else 0}")
            if not isv: e(f"s_branch {lj}")
        self.lab(lj)
        e("s_nop 7")
        for T in range(2):
            self.lds(f"ds_write_b128 v{VREDW}, {vr(KVACC+4*T,4)} offset:{T*1024}")
        self.wait(lg="all")
        e("s_barrier")
        for st in range(2, self.c.look):
            self.q_dma_x(st); self.q_dma_w(st)
        ls = self.newlab("nored")
        e(f"s_cmp_lg_u32 s{sW}, 0")
        e(f"s_cbranch_scc1 {ls}")
        for p in range(4):
            for q in range(2):
                e(f"ds_read_b128 {vr(REDT+8*p+4*q,4)}, v{VREDR} offset:{p*2048+q*256}")
        for p in range(1, 4):
            e(f"s_waitcnt lgkmcnt({6-2*p})")
            for r in range(8):
                e(f"v_add_f32 v{REDT+r}, v{REDT+r}, v{REDT+8*p+r}")
        for r in range(8):
            e(f"v_mul_f32 v{REDT+r}, s{sKVEC}, v{REDT+r}")
        for r in range(4):
            e(f"v_cvt_pk_bf16_f32 v{REDT+8+r}, v{REDT+2*r}, v{REDT+2*r+1}")
        e(f"buffer_store_dwordx4 {vr(REDT+8,4)}, v{VKVST}, {sr(SKV,4)}, 0 offen sc1")
        e(f"v_max3_f32 v1, |v{REDT}|, |v{REDT+1}|, |v{REDT+2}|")
        e(f"v_max3_f32 v1, v1, |v{REDT+3}|, |v{REDT+4}|")
        e(f"v_max3_f32 v1, v1, |v{REDT+5}|, |v{REDT+6}|")
        e(f"v_max_f32 v1, v1, |v{REDT+7}|")
        e(f"v_cmp_lt_f32 vcc, {hex(f2u(2.0**40))}, v1")
        e(f"s_cmp_lg_u64 vcc, 0")
        e(f"s_cselect_b32 s{sUNSAFE}, 0x10001, 1")
        self.lab(ls)
        self.stamp("kvdone")

    def kv_publish(self):
        e = self.e
        ls = self.newlab("nopub")
        e(f"s_cmp_lg_u32 s{sW}, 0")
        e(f"s_cbranch_scc1 {ls}")
        e(f"v_mov_b32 v1, s{sUNSAFE}")
        e(f"s_and_b32 s{sT1}, s2, 3")
        e(f"s_lshl_b32 s{sT1}, s{sT1}, 6")
        e(f"s_mov_b64 exec, 1")
        e(f"buffer_atomic_add v1, off, {sr(SDBG,4)}, s{sT1} sc1")
        e(f"s_mov_b64 exec, -1")
        self.lab(ls)

    def kv_load(self, j, q):
        self.vmem(f"buffer_load_dwordx4 {ar(16*j+4*q,4)}, v{VL16}, {sr(SKV,4)}, s{sKVOFF} offen offset:{q*1024} sc1",
                  f"K{j}" if q < 2 else f"V{j}")
        if q == 3:
            self.e(f"s_add_u32 s{sKVOFF}, s{sKVOFF}, 4096")

    def spin_check(self, load, test, name):
        e = self.e
        lr, lb = self.newlab(name + "_retry"), self.newlab(name + "_ok")
        test()
        e("s_cmp_lg_u64 vcc, 0")
        e(f"s_cbranch_scc1 {lr}")
        self.lab(lb)
        main, self.out = self.out, []
        self.lab(lr)
        e(f"s_mov_b32 s{sSPIN}, 0")
        ll = self.newlab(name + "_loop")
        self.lab(ll)
        e("s_sleep 2")
        e(load)
        e(f"s_add_u32 s{sSPIN}, s{sSPIN}, 1")
        e(f"s_cmp_gt_u32 s{sSPIN}, {SPIN_MAX}")
        e("s_waitcnt vmcnt(0)")
        e(f"s_cbranch_scc1 {lb}")
        test()
        e("s_cmp_lg_u64 vcc, 0")
        e(f"s_cbranch_scc1 {ll}")
        e(f"s_branch {lb}")
        self.tail += self.out
        self.out = main

    def q_proj(self):
        e = self.e
        L = self.c.look
        self.cm("---- Q projection, 16 stages of 64 k")
        kvq = [(j, q) for j in range(3) for q in range(4)]
        poll = f"buffer_load_dword v{VPOLL}, v{VPOLLA}, {sr(SDBG,4)}, 0 offen sc1"
        for st in range(17):
            self.wait(vm=f"q{st}" if st < 16 else None, lg="all" if st > 0 else None)
            if st < 16: e("s_barrier")
            if st == L: self.kv_publish()
            mf, rd, dm = [], [], []
            if st > 0:
                b = (st - 1) & 1
                for kk in range(2):
                    for t4 in range(4):
                        for c2 in range(2):
                            d = vr(QACC + 4*(c2*4+t4), 4)
                            c = d if (st > 1 or kk) else "0"
                            mf.append(f"v_mfma_f32_16x16x32_bf16 {d}, {vr(WF+16*b+8*kk+4*c2,4)}, {vr(XF+32*b+16*kk+4*t4,4)}, {c}")
            if st < 16:
                b = st & 1
                sl = self.slot_of(st); win = sl >> 1; off = (sl & 1) * SLOT
                for kk in range(2):
                    for c2 in range(2):
                        for h in range(2):
                            rd.append(f"ds_read_b64_tr_b16 {vr(WF+16*b+8*kk+4*c2+2*h,2)}, v{VRW+3*c2+win} offset:{off+kk*4096+h*512}")
                    for t4 in range(4):
                        rd.append(f"ds_read_b128 {vr(XF+32*b+16*kk+4*t4,4)}, v{VRX+3*kk+win} offset:{off+t4*2048}")
            if st == 13 - L:
                dm.append(lambda: self.vmem(poll, "poll"))
            if st + L < 16:
                dm += self.q_dma_ops(st + L, "x") + self.q_dma_ops(st + L, "w")
            if st == 16 - L:
                def chk():
                    self.wait(vm="poll")
                    def test():
                        e(f"v_and_b32 v1, 0xffff, v{VPOLL}")
                        e(f"v_cmp_ne_u32 vcc, 64, v1")
                    self.spin_check(poll, test, "kv")
                    e(f"v_cmp_lt_u32 vcc, 0xffff, v{VPOLL}")
                    e(f"s_cmp_lg_u64 vcc, 0")
                    e(f"s_cselect_b32 s{sUNSAFE}, 1, {self.c.force_fb}")
                    self.stamp("kvready")
                dm.append(chk)
            if st >= 16 - L:
                n = 6 if st < 16 else len(kvq)
                for (j, q) in kvq[:n]:
                    dm.append(lambda j=j, q=q: self.kv_load(j, q))
                kvq = kvq[n:]
            n = max(len(mf), len(rd), 2 * len(dm))
            for i in range(n):
                if i < len(mf): e(mf[i])
                if i < len(rd): self.lds(rd[i])
                if i % 2 == 0 and i // 2 < len(dm): dm[i // 2]()
        self.stamp("qdone")
        self.cm("---- Q to LDS (bf16), addresses of the later phases")
        self.late_addresses()
        for c2 in range(2):
            for t4 in range(4):
                a = QACC + 4*(c2*4+t4)
                e(f"v_cvt_pk_bf16_f32 v{a}, v{a}, v{a+1}")
                e(f"v_cvt_pk_bf16_f32 v{a+1}, v{a+2}, v{a+3}")
                self.lds(f"ds_write_b64 v{VQW}, {vr(a,2)} offset:{(t4>>1)*2048 + c2*1024 + (t4&1)*256}")
        self.wait(lg="all")
        e("s_barrier")
        for s in range(4):
            e(f"s_add_u32 s{sT0}, s{sW}, {s}")
            e(f"s_and_b32 s{sT0}, s{sT0}, 3")
            e(f"s_lshl_b32 s{sT0}, s{sT0}, 11")
            e(f"s_add_u32 s{sT0}, s{sT0}, {L_Q}")
            e(f"v_add_u32 v{VQR}, s{sT0}, v{VL16}")
            for g in range(2):
                for a in range(2):
                    self.lds(f"ds_read_b128 {vr(Q0+16*s+8*g+4*a,4)}, v{VQR} offset:{g*8192+a*1024}", f"Q{s}{g}")

    def late_addresses(self):
        e = self.e
        e(f"v_and_b32 v5, 15, v{vL}")
        e(f"v_lshrrev_b32 v3, 4, v{vL}")
        e(f"s_mul_i32 s{sT0}, s{sW}, {XSLOT}")
        e(f"s_add_u32 s{sT0}, s{sT0}, {L_XFER[0]}")
        e(f"v_add_u32 v{VXW}, s{sT0}, v{VL16}")
        e(f"s_add_u32 s{sT0}, s{sW}, 1")
        e(f"s_and_b32 s{sT0}, s{sT0}, 3")
        e(f"s_mul_i32 s{sT0}, s{sT0}, {XSLOT}")
        e(f"s_add_u32 s{sT0}, s{sT0}, {L_XFER[0]}")
        e(f"v_add_u32 v{VXR}, s{sT0}, v{VL16}")
        e(f"v_lshrrev_b32 v2, 3, v{vL}")
        e(f"v_and_b32 v4, 7, v{vL}")
        e(f"v_lshlrev_b32 v1, 1, v3")
        e(f"v_xor_b32 v1, v1, v4")
        e(f"v_lshlrev_b32 v1, 4, v1")
        e(f"v_lshl_add_u32 v1, v2, 11, v1")
        e(f"s_lshl_b32 s{sT0}, s{sW}, 14")
        e(f"v_add_u32 v{VWO}, s{sT0}, v1")
        e(f"v_lshlrev_b32 v4, 4, v4")
        e(f"v_lshl_add_u32 v1, v2, 11, v4")
        e(f"s_lshl_b32 s{sT0}, s{sW}, 16")
        e(f"v_add_u32 v{VOUT}, s{sT0}, v1")
        e(f"v_mul_u32_u24 v1, 144, v2")
        e(f"s_mul_i32 s{sT1}, s{sW}, 4608")
        e(f"s_add_u32 s{sT1}, s{sT1}, {L_STAGE}")
        e(f"v_add3_u32 v{VOR}, v1, v4, s{sT1}")
        e(f"v_mul_u32_u24 v1, 144, v5")
        e(f"v_lshl_add_u32 v1, v3, 3, v1")
        e(f"v_add_u32 v{VOW}, s{sT1}, v1")
        e(f"v_bfe_u32 v1, v{vL}, 1, 4")
        e(f"v_and_b32 v2, 1, v{vL}")
        e(f"v_lshlrev_b32 v2, 9, v2")
        e(f"v_lshl_add_u32 v1, v1, 11, v2")
        e(f"v_add_u32 v{VGATE}, s{sT0}, v1")
        e(f"s_add_u32 s{sT0}, s{sW}, 3")
        e(f"s_and_b32 s{sT0}, s{sT0}, 3")
        e(f"s_lshl_b32 s{sT0}, s{sT0}, 16")
        e(f"s_lshl_b32 s{sT1}, s{sHP}, 11")
        e(f"s_add_u32 s{sT0}, s{sT0}, s{sT1}")
        e(f"v_and_b32 v2, 1, v3")
        e(f"v_lshrrev_b32 v4, 1, v3")
        e(f"v_lshlrev_b32 v1, 4, v5")
        e(f"v_lshl_add_u32 v1, v2, 10, v1")
        e(f"v_lshl_add_u32 v1, v4, 8, v1")
        e(f"v_add_u32 v{VOST}, s{sT0}, v1")
        e(f"v_lshrrev_b32 v1, 2, v5")
        e(f"v_lshl_add_u32 v1, v2, 2, v1")
        e(f"v_lshl_add_u32 v1, v4, 4, v1")
        e(f"v_lshrrev_b32 v6, 3, v5")
        e(f"v_lshl_add_u32 v6, v2, 1, v6")
        e(f"v_and_b32 v7, 3, v5")
        e(f"v_lshlrev_b32 v7, 3, v7")
        e(f"v_lshl_add_u32 v7, v6, 5, v7")
        e(f"v_lshl_add_u32 v{VTR}, v1, 7, v7")
        for T in range(1, 4):
            e(f"v_xor_b32 v{VTR+T}, {32*T}, v{VTR}")
        for T in range(4):
            e(f"v_add_u32 v{VTR+4+T}, 0x10000, v{VTR+T}")
        for r in range(4, 8):
            e(f"v_mov_b32 v{r}, -1")

    @staticmethod
    def ofrag(f):
        if f >= 32: return ar(4 * (f - 32), 4)
        if f < 4: return vr(ACCO[0] + 4 * f, 4)
        f -= 4
        if f < 14: return vr(Q0 + 4 * f, 4)
        return vr(200 + 4 * (f - 14), 4)

    def o_load(self, f):
        if f % 4 == 0:
            self.e(f"s_lshl_b32 s{sT2}, s{sW}, 16")
            if f: self.e(f"s_add_u32 s{sT2}, s{sT2}, {f*1024}")
        self.vmem(f"buffer_load_dwordx4 {self.ofrag(f)}, v{VL16}, {sr(SO,4)}, s{sT2} offen offset:{(f%4)*1024} sc1", f"O{f>>1}")

    def wo_dma(self, p):
        head = 2 * (p & 15) + (p >> 4)
        return [lambda: self.e(f"s_add_u32 m0, s{sWO0}, {p*4096}"),
                lambda: self.e(f"s_mov_b32 s{sT1}, {head << 16}"),
                lambda: self.vmem(f"buffer_load_dwordx4 v{VWO}, {sr(SWO,4)}, s{sT1} offen lds", "wo_early" if p < 26 else "wo_late")]

    def normalise(self, g):
        e = self.e
        O, Lr = ACCO[g], ACCL[g]
        ops = []
        def chk():
            lf, lb = self.newlab("fb"), self.newlab("fbret")
            e(f"v_subrev_u32 v1, 0x3f800000, v{Lr}")
            e(f"v_cmp_lt_u32 vcc, {hex(64 << 23)}, v1")
            e(f"s_or_b32 vcc_lo, vcc_lo, s{sUNSAFE}")
            e(f"s_cmp_lg_u64 vcc, 0")
            e(f"s_cbranch_scc1 {lf}")
            self.lab(lb)
            e(f"v_rcp_f32 v{VRCP}, v{Lr}")
            main, self.out = self.out, []
            self.lab(lf)
            self.fallback(g)
            e(f"s_branch {lb}")
            self.tail += self.out
            self.out = main
        ops.append(chk)
        ops.append(lambda: e("s_nop 0"))
        for r in range(16):
            ops.append(lambda r=r: e(f"v_mul_f32 v{O+r}, v{VRCP}, v{O+r}"))
        for r in range(8):
            ops.append(lambda r=r: e(f"v_cvt_pk_bf16_f32 v{VPK+r}, v{O+2*r}, v{O+2*r+1}"))
        for r in range(8):
            ops.append(lambda r=r: e(f"v_min_u32 v{VPK+r}, -2, v{VPK+r}"))
        ops.append(lambda: e(f"s_mov_b32 s{sT3}, {g*32768}"))
        for a in range(2):
            ops.append(lambda a=a: self.vmem(f"buffer_store_dwordx4 {vr(VPK+4*a,4)}, v{VOST}, {sr(SO,4)}, s{sT3} offen offset:{a*512} sc1", f"pub{g}"))
        return ops

    def fallback(self, g):
        e = self.e
        if g == 0:
            K, V, S, C, M = (lambda a, n: vr(200+a, n)), (lambda a, n: vr(208+a, n)), 216, 232, 248
        else:
            K, V, S, C, M = (lambda a, n: ar(a, n)), (lambda a, n: ar(8+a, n)), 48, 64, 80
        Q = Q0 + 48 + 8 * g
        O, Lr = ACCO[g], ACCL[g]
        self.cm("true-max path, pass 1: row maxima")
        e("s_nop 15")
        e(f"v_mov_b32 v{M}, 0xff800000")
        e(f"s_mov_b32 s{sLOOP}, 0")
        l1 = self.newlab("fbmax")
        self.lab(l1)
        for a in range(2):
            e(f"buffer_load_dwordx4 {K(4*a,4)}, v{VL16}, {sr(SKV,4)}, s{sLOOP} offen offset:{a*1024} sc1")
        e("s_waitcnt vmcnt(0)")
        e(f"v_mfma_f32_32x32x16_bf16 {vr(S,16)}, {K(0,4)}, {vr(Q,4)}, 0")
        e(f"v_mfma_f32_32x32x16_bf16 {vr(S,16)}, {K(4,4)}, {vr(Q+4,4)}, {vr(S,16)}")
        e("s_nop 15")
        for r in range(0, 16, 2):
            e(f"v_max3_f32 v{M}, v{M}, v{S+r}, v{S+r+1}")
        e(f"s_add_u32 s{sLOOP}, s{sLOOP}, 4096")
        e(f"s_cmp_lt_u32 s{sLOOP}, 0x40000")
        e(f"s_cbranch_scc1 {l1}")
        e(f"v_mov_b32 v{M+1}, v{M}")
        e("s_nop 1")
        e(f"v_permlane32_swap_b32 v{M}, v{M+1}")
        e("s_nop 1")
        e(f"v_max_f32 v{M}, v{M}, v{M+1}")
        for r in range(16):
            e(f"v_sub_f32 v{C+r}, 0, v{M}")
            e(f"v_mov_b32 v{O+r}, 0")
        for r in range(4):
            e(f"v_mov_b32 v{Lr+r}, 0")
        self.cm("pass 2")
        e(f"s_mov_b32 s{sLOOP}, 0")
        l2 = self.newlab("fbsum")
        self.lab(l2)
        for a in range(2):
            e(f"buffer_load_dwordx4 {K(4*a,4)}, v{VL16}, {sr(SKV,4)}, s{sLOOP} offen offset:{a*1024} sc1")
        for a in range(2):
            e(f"buffer_load_dwordx4 {V(4*a,4)}, v{VL16}, {sr(SKV,4)}, s{sLOOP} offen offset:{2048+a*1024} sc1")
        e("s_waitcnt vmcnt(0)")
        e(f"v_mfma_f32_32x32x16_bf16 {vr(S,16)}, {K(0,4)}, {vr(Q,4)}, {vr(C,16)}")
        e(f"v_mfma_f32_32x32x16_bf16 {vr(S,16)}, {K(4,4)}, {vr(Q+4,4)}, {vr(S,16)}")
        e("s_nop 15")
        for r in range(16):
            e(f"v_exp_f32 v{S+r}, v{S+r}")
        e("s_nop 1")
        for h in range(2):
            e(f"v_smfmac_f32_32x32x32_bf16 {vr(O,16)}, {V(4*h,4)}, {vr(S+8*h,8)}, v{IDX}")
            e(f"v_smfmac_f32_16x16x64_bf16 {vr(Lr,4)}, {vr(ONES,4)}, {vr(S+8*h,8)}, v{IDX}")
        e("s_nop 15")
        e(f"s_add_u32 s{sLOOP}, s{sLOOP}, 4096")
        e(f"s_cmp_lt_u32 s{sLOOP}, 0x40000")
        e(f"s_cbranch_scc1 {l2}")

    def gate_load(self, g):
        return f"buffer_load_dword v{VPOLL}, v{VGATE}, {sr(SO,4)}, s{sT3} offen sc1"

    def gate_issue(self, g):
        self.e(f"s_mov_b32 s{sT3}, {g*32768}")
        self.vmem(self.gate_load(g), f"gate{g}")

    def gate_check(self, g):
        self.wait(vm=f"gate{g}")
        self.spin_check(self.gate_load(g), lambda: self.e(f"v_cmp_eq_u32 vcc, -1, v{VPOLL}"), f"gate{g}_")

    def attention(self):
        e = self.e
        c = self.c
        order = []
        for i in range(10): order += [(0, 0, i), (1, 0, i)]
        order += [(0,0,10),(0,0,11),(1,0,10),(0,0,12),(0,0,13),(1,0,11),(0,0,14),(0,0,15),(1,0,12),(1,0,13),(1,0,14),(1,0,15)]
        for s in range(1, 4):
            for g in range(2):
                order += [(g, s, i) for i in range(16)]
        assert len(order) == 128
        X = {}
        def at(n, pos, *fns):
            X.setdefault((n, pos), []).extend(fns)
        def SB(n): return S0 + 16 * (n % 3)
        def QK(n, a):
            g, s, i = order[n]
            d = vr(SB(n), 16)
            e(f"v_mfma_f32_32x32x16_bf16 {d}, {ar(16*i+4*a,4)}, {vr(Q0+16*s+8*g+4*a,4)}, {d if a else 0}")
        def PV(n, h):
            g, s, i = order[n]
            e(f"v_smfmac_f32_32x32x32_bf16 {vr(ACCO[g],16)}, {ar(16*i+8+4*h,4)}, {vr(SB(n)+8*h,8)}, v{IDX}")
        def RS(n, h):
            g, s, i = order[n]
            e(f"v_smfmac_f32_16x16x64_bf16 {vr(ACCL[g],4)}, {vr(ONES,4)}, {vr(SB(n)+8*h,8)}, v{IDX}")
        def EX(n, r):
            e(f"v_exp_f32 v{SB(n)+r}, v{SB(n)+r}")
        kvq = [(j, q) for j in range(3, 16) for q in range(4)]
        n = 0
        while kvq:
            for pos in (2, 3, 4, 5)[:c.kvrate]:
                if kvq:
                    j, q = kvq.pop(0)
                    at(n, pos, lambda j=j, q=q: self.kv_load(j, q))
            n += 1
        seen = set()
        for n in range(32):
            g, s, i = order[n]
            if i in seen: continue
            seen.add(i)
            if n >= 2: at(n - 2, 5, lambda i=i: self.wait(vm=f"K{i}"))
            at(n, 3, lambda i=i: self.wait(vm=f"V{i}"))
        def xfer(g, nlast, pre_barrier=(), post_barrier=()):
            off = L_XFER[g] - L_XFER[0]
            wr = [lambda q=q: self.lds(f"ds_write_b128 v{VXW}, {vr(ACCO[g]+4*q,4)} offset:{off+q*1024}") for q in range(4)]
            wr.append(lambda: self.lds(f"ds_write_b128 v{VXW}, {vr(ACCL[g],4)} offset:{off+4096}"))
            rd = [lambda q=q: self.lds(f"ds_read_b128 {vr(ACCO[g]+4*q,4)}, v{VXR} offset:{off+q*1024}") for q in range(4)]
            rd.append(lambda: self.lds(f"ds_read_b128 {vr(ACCL[g],4)}, v{VXR} offset:{off+4096}"))
            for q in range(5): at(nlast + 2, 1 + q, wr[q])
            at(nlast + 3, 2, *pre_barrier)
            at(nlast + 3, 3, lambda: self.wait(lg="all"), lambda: e("s_barrier"))
            at(nlast + 3, 4, rd[0], *post_barrier); at(nlast + 3, 5, rd[1])
            at(nlast + 4, 0, rd[2]); at(nlast + 4, 1, rd[3]); at(nlast + 4, 2, rd[4])
            at(nlast + 5, 3, lambda: self.wait(lg="all"))
        def cnt2_add():
            ls = self.newlab("noc2")
            e(f"s_cmp_lg_u32 s{sW}, 0")
            e(f"s_cbranch_scc1 {ls}")
            e(f"v_mov_b32 v1, 1")
            e(f"s_lshl_b32 s{sT1}, s{sTB}, 4")
            e(f"s_mov_b64 exec, 1")
            e(f"buffer_atomic_add v1, off, {sr(SDBG,4)}, s{sT1} offset:4 sc1")
            e(f"s_mov_b64 exec, -1")
            e(f"s_nop 3")
            self.lab(ls)
        xfer(0, 27)
        xfer(1, 31)
        xfer(0, 47, pre_barrier=[lambda: self.wait(vm="clear")], post_barrier=[cnt2_add])
        xfer(1, 63)
        xfer(0, 79)
        xfer(1, 95, pre_barrier=[lambda: self.wait(vm="wo_early")])
        for k in range(4):
            g, a = k >> 1, k & 1
            at(38 + k, 2, lambda g=g: e(f"s_mov_b32 s{sT3}, {g*32768}"))
            at(38 + k, 3, lambda a=a: self.vmem(f"buffer_store_dwordx4 v[4:7], v{VOST}, {sr(SO,4)}, s{sT3} offen offset:{a*512} sc1", "clear"))
        free = [n for n in range(42, 96) if n % 16 >= 6]
        for p in range(26):
            m, so, ld = self.wo_dma(p)
            at(free[p], 2, m, so); at(free[p], 3, ld)
        for p in range(26, 32):
            m, so, ld = self.wo_dma(p)
            at(102 + p - 26, 2, m, so); at(102 + p - 26, 3, ld)
        c2load = f"buffer_load_dword v{VPOLL}, off, {sr(SDBG,4)}, s{sT2} offset:4 sc1"
        at(101, 2, lambda: e(f"s_lshl_b32 s{sT2}, s{sTB}, 4"))
        at(101, 3, lambda: self.vmem(c2load, "c2"))
        def c2chk():
            self.wait(vm="c2")
            self.spin_check(c2load, lambda: e(f"v_cmp_ne_u32 vcc, 16, v{VPOLL}"), "c2_")
        at(109, 2, c2chk)
        ops = self.normalise(0)
        at(113, 1, *ops[:2]); at(113, 2, *ops[2:10]); at(113, 3, *ops[10:18]); at(113, 4, *ops[18:26]); at(113, 5, *ops[26:35])
        at(114, 0, ops[35]); at(114, 1, ops[36])
        at(114, 2, lambda: self.stamp("pubA"))
        at(116, 2, lambda: self.wait(vm="wo_late")); at(116, 3, lambda: e("s_barrier"))
        at(112 + c.gateA, 2, lambda: self.gate_issue(0))
        at(112 + c.gateAchk, 1, lambda: self.gate_check(0), lambda: self.stamp("gateA"))
        self.nextO = 0
        def oload():
            self.o_load(self.nextO); self.nextO += 1
        for n in range(112 + c.gateAchk, 128):
            for pos in (2, 3, 4): at(n, pos, oload)
        self.cm("---- attention")
        self.wait(vm="K0", lg="Q00")
        QK(0, 0); QK(0, 1)
        self.stamp("attn")
        self.wait(lg="Q01")
        e("s_nop 10")
        def extras(n, pos):
            for f in X.pop((n, pos), []): f()
        for n in range(128):
            self.cm(f"slot {n} {order[n]}")
            if n + 1 < 128: QK(n + 1, 0)
            extras(n, 0)
            for r in (0, 1, 2): EX(n, r)
            if n + 1 < 128: QK(n + 1, 1)
            extras(n, 1)
            for r in (3, 4, 5): EX(n, r)
            if n: PV(n - 1, 1)
            extras(n, 2)
            for r in (6, 7, 8): EX(n, r)
            if n: RS(n - 1, 1)
            extras(n, 3)
            for r in (9, 10): EX(n, r)
            PV(n, 0)
            extras(n, 4)
            for r in (11, 12, 13): EX(n, r)
            RS(n, 0)
            extras(n, 5)
            for r in (14, 15): EX(n, r)
        assert not X, X.keys()
        self.wo_reads(0)[0](); self.wo_reads(0)[1]()
        RS(127, 1); PV(127, 1)
        self.stamp("T")
        for f in self.wo_reads(0)[2:]: f()
        e("s_nop 5")
        for f in self.normalise(1): f()
        self.stamp("pubB")

    def wo_reads(self, p):
        b = 128 + 16 * (p & 1)
        return [lambda T=T, h=h: self.lds(f"ds_read_b64_tr_b16 {ar(b+4*T+2*h,2)}, v{VTR+4*(p>>4)+T} offset:{(p&15)*4096+h*1024}", f"W{p}")
                for T in range(4) for h in range(2)]

    def o_proj(self):
        e = self.e
        c = self.c
        self.cm("---- output projection")
        for p in range(32):
            ex = []
            if p == c.gateB: ex.append(lambda: self.gate_issue(1))
            if p == c.gateBchk: ex.append(lambda: (self.gate_check(1), self.stamp("gateB")))
            lim = 32 if p < c.gateBchk else 64
            nl = min(lim - self.nextO, 4)
            for k in range(nl):
                ex.append(lambda f=self.nextO + k: self.o_load(f))
            self.nextO += nl
            rd = self.wo_reads(p + 1) if p < 31 else []
            assert self.vm.count(f"O{p}") == 2
            self.wait(vm=f"O{p}", lg=f"W{p}")
            b = 128 + 16 * (p & 1)
            i = 0
            for T in range(4):
                for u in range(2):
                    d = vr(QACC + 4 * (2 * T + u), 4)
                    e(f"v_mfma_f32_16x16x32_bf16 {d}, {ar(b+4*T,4)}, {self.ofrag(2*p+u)}, {d if p else 0}")
                    if i < len(rd): rd[i]()
                    if i < len(ex): ex[i]()
                    i += 1
        self.stamp("oproj")
        e("s_nop 7")
        lslow, lback = "L_slow", "L_epi"
        e(f"v_cmp_u_f32 vcc, v{QACC}, v{QACC+4}")
        if c.force_slow:
            e(f"s_branch {lslow}")
        e("s_cmp_lg_u64 vcc, 0")
        e(f"s_cbranch_scc1 {lslow}")
        self.lab(lback)
        for T in range(4):
            for u in range(2):
                a = QACC + 4 * (2 * T + u)
                e(f"v_cvt_pk_bf16_f32 v{a}, v{a}, v{a+1}")
                e(f"v_cvt_pk_bf16_f32 v{a+1}, v{a+2}, v{a+3}")
                e(f"ds_write_b64 v{VOW}, {vr(a,2)} offset:{u*16*144 + T*32}")
        e("s_waitcnt lgkmcnt(0)")
        for i in range(4):
            e(f"ds_read_b128 {vr(80+4*i,4)}, v{VOR} offset:{i*8*144}")
        for i in range(4):
            e(f"s_mov_b32 s{sT0}, {i*8*2048}")
            e(f"s_waitcnt lgkmcnt({3-i})")
            e(f"buffer_store_dwordx4 {vr(80+4*i,4)}, v{VOUT}, {sr(SOUT,4)}, s{sT0} offen")
        main, self.out = self.out, []
        self.lab(lslow)
        e("s_waitcnt vmcnt(0) lgkmcnt(0)")
        for r in range(32): e(f"v_mov_b32 v{QACC+r}, 0")
        e(f"s_lshl_b32 s{sT2}, s{sW}, 16")
        e(f"s_mov_b32 s{sLOOP}, 0")
        e(f"s_mov_b32 s{sSPIN}, 0")
        self.lab("L_slow_loop")
        for u in range(2):
            e(f"buffer_load_dwordx4 {vr(80+4*u,4)}, v{VL16}, {sr(SO,4)}, s{sT2} offen offset:{u*1024} sc1")
        e(f"s_add_u32 s{sSPIN}, s{sSPIN}, 1")
        e("s_waitcnt vmcnt(0)")
        e("v_max3_u32 v1, v80, v81, v82")
        e("v_max3_u32 v1, v1, v83, v84")
        e("v_max3_u32 v1, v1, v85, v86")
        e("v_max_u32 v1, v1, v87")
        e("v_cmp_eq_u32 vcc, -1, v1")
        e(f"s_cmp_gt_u32 s{sSPIN}, {SPIN_MAX}")
        e("s_cbranch_scc1 L_slow_go")
        e("s_cmp_lg_u64 vcc, 0")
        e("s_cbranch_scc1 L_slow_loop")
        self.lab("L_slow_go")
        for T in range(4):
            for h in range(2):
                e(f"ds_read_b64_tr_b16 {ar(128+4*T+2*h,2)}, v{VTR+T} offset:{h*1024}")
        e("s_waitcnt lgkmcnt(0)")
        for T in range(4):
            e(f"v_add_u32 v{VTR+T}, 4096, v{VTR+T}")
            for u in range(2):
                d = vr(QACC + 4 * (2 * T + u), 4)
                e(f"v_mfma_f32_16x16x32_bf16 {d}, {ar(128+4*T,4)}, {vr(80+4*u,4)}, {d}")
        e("s_nop 7")
        e(f"s_add_u32 s{sT2}, s{sT2}, 2048")
        e(f"s_add_u32 s{sLOOP}, s{sLOOP}, 1")
        e(f"s_cmp_lt_u32 s{sLOOP}, 32")
        e("s_cbranch_scc1 L_slow_loop")
        e(f"s_branch {lback}")
        self.tail += self.out
        self.out = main

    def finish(self):
        e = self.e
        if self.c.stamps:
            e("s_waitcnt vmcnt(0)")
            self.stamp("end")
            e("s_waitcnt lgkmcnt(0)")
            self.srd(SO, sPTR + 14, WS_STAMP, 0x40000)
            e(f"s_lshl2_add_u32 s{sT0}, s2, s{sW}")
            e(f"s_lshl_b32 s{sT0}, s{sT0}, 7")
            e("s_mov_b64 exec, 1")
            for i in range(self.nstamp):
                e(f"v_mov_b32 v1, s{sSTAMP+2*i}")
                e(f"buffer_store_dword v1, off, {sr(SO,4)}, s{sT0} offset:{4*i}")
                e("s_nop 1")
        self.lab("L_end")
        e("s_endpgm")

    def build(self):
        self.prologue()
        self.kv_proj()
        self.q_proj()
        self.attention()
        self.o_proj()
        self.finish()
        head = open("cdna_kernels/" + NAME + ".s.ref").read().split("; Override launch geometry")[0]
        txt = head + f"""; @launch grid=(256,1,1) block=(256,1,1) lds=163840
; Fused multi-query attention: K/V projection -> (grid hand-off) -> Q projection -> attention with K/V resident
; in registers -> (token-block hand-off) -> output projection.  Generated by a script (hand-written schedule).
.amdgcn_target "amdgcn-amd-amdhsa--gfx950"
.text
.globl {NAME}_kernel
.p2align 8
.type {NAME}_kernel,@function
{NAME}_kernel:
""" + "\n".join(self.out) + "\n" + "\n".join(self.tail) + f"""
.section .rodata,"a"
.p2align 6
.amdhsa_kernel {NAME}_kernel
  .amdhsa_next_free_vgpr 512
  .amdhsa_next_free_sgpr 102
  .amdhsa_accum_offset 256
  .amdhsa_group_segment_fixed_size 0
  .amdhsa_kernarg_size 64
  .amdhsa_user_sgpr_count 2
  .amdhsa_user_sgpr_kernarg_segment_ptr 1
  .amdhsa_system_sgpr_workgroup_id_x 1
.end_amdhsa_kernel
"""
        if self.c.stamps:
            txt = "; stamps: " + " ".join(self.stampnames) + "\n" + txt
        return txt


if __name__ == "__main__":
    cfg = Cfg()
    for a in sys.argv[2:]:
        k, v = a.split("=")
        assert hasattr(cfg, k), k
        setattr(cfg, k, int(v))
    open(sys.argv[1], "w").write(Gen(cfg).build())
```

```python
import sys, math, struct

NAME = "standalone__grouped_kv_mqa__prompt"

class Cfg:
    stamps = 0
    look = 2
    force_fb = 0
    force_slow = 0
    kvrate = 3
    gateA = 7
    gateAchk = 10
    gateB = 7
    gateBchk = 12
    rot = 1
    probe = -1

def f2u(x):
    return struct.unpack("<I", struct.pack("<f", x))[0]

def vr(a, n=1, k="v"):
    return f"{k}{a}" if n == 1 else f"{k}[{a}:{a+n-1}]"
def ar(a, n=1):
    return vr(a, n, "a")
def sr(a, n=1):
    return vr(a, n, "s")

SX, SWQ, SWKV, SWO, SOUT, SDBG, SKV, SO = 4, 8, 12, 16, 20, 24, 28, 32
sTB, sHP, sW, sROT = 36, 37, 38, 39
sT0, sT1, sT2, sT3 = 40, 41, 42, 43
sUNSAFE, sSPIN = 44, 45
sEX = 46
sPTR = 48
sMX, sMW = 64, 65
sKVEC = 66
sKVOFF = 67
sWO0 = 68
sLOOP = 69
sSTAMP = 72

vL = 0
vT = 1
VX = 8
VW = 12
VKX = 14
VKW = 16
VKRX = 17
VKRW = 19
VREDW, VREDR, VKVST = 21, 22, 23
VRX = 24
VRW = 30
VQW, VL16 = 36, 37
VPOLL = 38
VPOLLA = 39
ONES, IDX = 40, 44
VQR = 45
VRCP = 46
S0 = 48
ACCO = (96, 112)
ACCL = (128, 132)
Q0 = 136
VXW, VXR, VWO, VOST, VGATE, VOW, VOR, VOUT = 8, 9, 10, 11, 12, 13, 14, 15
VTR = 16
VPK = 24
XF = 192
WF = 160
QACC = 48
KVACC = 80
REDT = 224

SLOT = 24576
L_RED = 147456
L_Q = 147456
L_XFER = (106496, 131072)
XSLOT = 5120
L_STAGE = 131072
WS_O = 1 << 20
WS_STAMP = 8 << 20
SPIN_MAX = 1 << 20


class Gen:
    def __init__(self, cfg):
        self.c = cfg
        self.out = []
        self.tail = []
        self.vm = []; self.vmdone = 0
        self.lg = []; self.lgdone = 0
        self.nstamp = 0
        self.stampnames = []
        self.uid = 0

    def e(self, s):
        self.out.append("    " + s)
    def lab(self, s):
        self.out.append(s + ":")
    def cm(self, s):
        self.out.append("    ; " + s)
    def newlab(self, p):
        self.uid += 1
        return f"L_{p}{self.uid}"
    def vmem(self, s, tag=None):
        self.e(s); self.vm.append(tag)
    def lds(self, s, tag=None):
        self.e(s); self.lg.append(tag)
    def _need(self, lst, done, tag, cap):
        idx = [i for i, t in enumerate(lst) if t == tag]
        assert idx, f"no op tagged {tag}"
        last = idx[-1]
        if last < done:
            return None, done
        n = min(len(lst) - 1 - last, cap)
        return n, len(lst) - n
    def wait(self, vm=None, lg=None):
        parts = []
        if vm is not None:
            if vm == "all":
                parts.append("vmcnt(0)"); self.vmdone = len(self.vm)
            else:
                n, self.vmdone = self._need(self.vm, self.vmdone, vm, 63)
                if n is not None: parts.append(f"vmcnt({n})")
        if lg is not None:
            if lg == "all":
                parts.append("lgkmcnt(0)"); self.lgdone = len(self.lg)
            else:
                n, self.lgdone = self._need(self.lg, self.lgdone, lg, 15)
                if n is not None: parts.append(f"lgkmcnt({n})")
        if parts:
            self.e("s_waitcnt " + " ".join(parts))
    def stamp(self, name):
        if self.c.stamps:
            r = sSTAMP + 2 * self.nstamp
            assert r + 1 < 102
            self.e(f"s_memrealtime {sr(r,2)}")
            self.nstamp += 1
            self.stampnames.append(name)
    def srd(self, s, ptr, off, nbytes):
        if off is None:
            self.e(f"s_mov_b32 s{s}, s{ptr}")
            self.e(f"s_mov_b32 s{s+1}, s{ptr+1}")
        else:
            self.e(f"s_add_u32 s{s}, s{ptr}, {off}")
            self.e(f"s_addc_u32 s{s+1}, s{ptr+1}, 0")
        self.e(f"s_mov_b32 s{s+2}, {nbytes}")
        self.e(f"s_mov_b32 s{s+3}, 0x20000")

    def prologue(self):
        e = self.e
        e("s_cmp_ge_u32 s2, 256")
        e("s_cbranch_scc1 L_end")
        self.stamp("start")
        e(f"s_load_dwordx16 {sr(sPTR,16)}, s[0:1], 0")
        e(f"v_lshrrev_b32 v1, 6, v0")
        e(f"v_and_b32 v{vL}, 63, v0")
        e(f"v_readfirstlane_b32 s{sW}, v1")
        e(f"s_and_b32 s{sT0}, s2, 7")
        e(f"s_bfe_u32 s{sT1}, s2, 0x10003")
        e(f"s_lshl1_add_u32 s{sTB}, s{sT0}, s{sT1}")
        e(f"s_lshr_b32 s{sHP}, s2, 4")
        if self.c.rot:
            e(f"s_lshl3_add_u32 s{sROT}, s{sT1}, s{sT0}")
            e(f"s_add_u32 s{sROT}, s{sROT}, s{sHP}")
        else:
            e(f"s_mov_b32 s{sROT}, 0")
        e(f"v_lshrrev_b32 v2, 3, v{vL}")
        e(f"v_lshrrev_b32 v3, 4, v{vL}")
        e(f"v_and_b32 v4, 7, v{vL}")
        e(f"v_xor_b32 v5, v4, v3")
        e(f"v_lshlrev_b32 v5, 4, v5")
        e(f"v_lshl_add_u32 v{VKX}, v2, 11, v5")
        e(f"v_xor_b32 v5, 64, v{VKX}")
        e(f"v_add_u32 v{VKX+1}, {8*2048-1024}, v5")
        e(f"v_lshrrev_b32 v5, 5, v{vL}")
        e(f"v_lshlrev_b32 v5, 1, v5")
        e(f"v_xor_b32 v5, v5, v{vL}")
        e(f"v_lshlrev_b32 v{VKW}, 4, v5")
        e(f"v_and_b32 v5, 1, v3")
        e(f"v_lshlrev_b32 v5, 1, v5")
        e(f"v_xor_b32 v5, v5, v4")
        e(f"v_lshlrev_b32 v5, 4, v5")
        e(f"v_lshl_add_u32 v5, v2, 11, v5")
        e(f"s_lshl_b32 s{sT2}, s{sW}, 15")
        e(f"v_add_u32 v{VW}, s{sT2}, v5")
        e(f"v_xor_b32 v5, 64, v{VW}")
        e(f"v_add_u32 v{VW+1}, {8*2048-1024}, v5")
        e(f"s_lshr_b32 s{sT2}, s{sHP}, 1")
        e(f"s_lshl_b32 s{sT2}, s{sT2}, 15")
        e(f"s_lshl_b32 s{sT3}, s{sW}, 9")
        e(f"s_add_u32 s{sT2}, s{sT2}, s{sT3}")
        e(f"s_mul_i32 s{sT3}, s{sW}, {SLOT}")
        e(f"s_lshl_b32 s{sT0}, s{sTB}, 18")
        e(f"s_lshl_b32 s{sT1}, s{sHP}, 7")
        e(f"s_lshl_b32 s{sMX}, s{sW}, 12")
        e(f"s_lshl_b32 s{sMW}, s{sW}, 11")
        e(f"s_add_u32 s{sMW}, s{sMW}, 16384")
        e(f"s_mov_b32 m0, s{sT3}")
        e("s_waitcnt lgkmcnt(0)")
        self.srd(SX, sPTR + 0, f"s{sT0}", 0x40000)
        for kc in range(4):
            if kc:
                e(f"s_add_u32 m0, s{sT3}, {kc*2048}")
                e(f"s_add_u32 s{sT2}, s{sT2}, 128")
            self.vmem(f"buffer_load_dwordx4 v{VKX}, {sr(SX,4)}, s{sT2} offen lds", "kvx")
            self.vmem(f"buffer_load_dwordx4 v{VKX+1}, {sr(SX,4)}, s{sT2} offen offset:1024 lds", "kvx")
        e(f"s_sub_u32 s{sT2}, 0x200000, s{sT1}")
        self.srd(SWQ, sPTR + 2, f"s{sT1}", f"s{sT2}")
        self.q_dma_w(0)
        e(f"s_bitcmp1_b32 s{sHP}, 0")
        e(f"s_cselect_b32 s{SWKV}, s{sPTR+6}, s{sPTR+4}")
        e(f"s_cselect_b32 s{SWKV+1}, s{sPTR+7}, s{sPTR+5}")
        e(f"s_cselect_b32 s{sKVEC}, 1.0, {hex(f2u(math.log2(math.e)/math.sqrt(32.0)))}")
        e(f"s_mov_b32 s{SWKV+2}, 0x10000")
        e(f"s_mov_b32 s{SWKV+3}, 0x20000")
        e(f"s_lshl_b32 s{sT2}, s{sW}, 14")
        for i4 in range(4):
            e(f"s_add_u32 m0, s{sT3}, {8192 + i4*4096}")
            if i4: e(f"s_add_u32 s{sT2}, s{sT2}, 4096")
            else: e("s_nop 0")
            for j in range(4):
                self.vmem(f"buffer_load_dwordx4 v{VKW}, {sr(SWKV,4)}, s{sT2} offen offset:{j*1024} lds", f"kvw{i4}")
        e(f"s_lshl_b32 s{sT2}, s{sW}, 16")
        e(f"v_add_u32 v{VX}, s{sT2}, v{VKX}")
        e(f"v_add_u32 v{VX+1}, s{sT2}, v{VKX+1}")
        e(f"v_add_u32 v{VX+2}, {16*2048-2048}, v{VX}")
        e(f"v_add_u32 v{VX+3}, {16*2048-2048}, v{VX+1}")
        self.q_dma_x(0)
        self.q_dma_x(1)
        self.q_dma_w(1)
        self.stamp("issued")
        e(f"s_lshl_b32 s{sT0}, s{sTB}, 18")
        e(f"s_lshl_b32 s{sT1}, s{sHP}, 7")
        e(f"s_sub_u32 s{sT2}, 0x200000, s{sT1}")
        self.srd(SWO, sPTR + 8, f"s{sT1}", f"s{sT2}")
        e(f"s_sub_u32 s{sT2}, 0x40000, s{sT1}")
        e(f"s_add_u32 s{sT1}, s{sT1}, s{sT0}")
        self.srd(SOUT, sPTR + 10, f"s{sT1}", f"s{sT2}")
        self.srd(SDBG, sPTR + 12, None, 256)
        self.srd(SKV, sPTR + 14, None, 0x40000)
        e(f"s_add_u32 s{sT0}, s{sT0}, {WS_O}")
        self.srd(SO, sPTR + 14, f"s{sT0}", 0x40000)
        e(f"s_lshl_b32 s{sKVOFF}, s{sW}, 16")
        e(f"s_lshl_b32 s{sWO0}, s{sW}, 10")
        e(f"v_and_b32 v5, 15, v{vL}")
        e(f"v_lshlrev_b32 v{VL16}, 4, v{vL}")
        e(f"v_lshrrev_b32 v6, 1, v5")
        e(f"v_xor_b32 v6, v6, v3")
        e(f"v_lshlrev_b32 v6, 4, v6")
        e(f"v_lshl_add_u32 v6, v5, 7, v6")
        e(f"v_add_u32 v{VKRX}, s{sT3}, v6")
        e(f"v_xor_b32 v{VKRX+1}, 64, v{VKRX}")
        e(f"s_lshr_b32 s{sT0}, s{sW}, 1")
        e(f"s_lshl_b32 s{sT0}, s{sT0}, 13")
        e(f"v_add_u32 v{VRX}, s{sT0}, v6")
        e(f"v_xor_b32 v{VRX+3}, 64, v{VRX}")
        for kk in range(2):
            for win in (1, 2):
                e(f"v_add_u32 v{VRX+3*kk+win}, {win*2*SLOT}, v{VRX+3*kk}")
        e(f"v_lshrrev_b32 v6, 2, v5")
        e(f"v_and_b32 v7, 3, v5")
        e(f"v_lshl_add_u32 v1, v3, 3, v6")
        e(f"v_and_b32 v2, 1, v3")
        e(f"v_lshlrev_b32 v4, 5, v2")
        e(f"v_lshl_add_u32 v4, v7, 3, v4")
        e(f"v_lshl_add_u32 v4, v1, 6, v4")
        e(f"s_add_u32 s{sT0}, s{sT3}, 8192")
        e(f"v_add_u32 v{VKRW}, s{sT0}, v4")
        e(f"v_xor_b32 v{VKRW+1}, 32, v{VKRW}")
        e(f"v_lshrrev_b32 v4, 3, v5")
        e(f"v_lshl_or_b32 v4, v2, 1, v4")
        e(f"s_and_b32 s{sT0}, s{sW}, 1")
        e(f"s_lshl_b32 s{sT0}, s{sT0}, 1")
        e(f"v_xor_b32 v4, s{sT0}, v4")
        e(f"v_lshlrev_b32 v4, 5, v4")
        e(f"v_lshl_add_u32 v4, v7, 3, v4")
        e(f"v_lshl_add_u32 v4, v1, 7, v4")
        e(f"v_add_u32 v{VRW}, 16384, v4")
        e(f"v_xor_b32 v{VRW+3}, 32, v{VRW}")
        for c2 in range(2):
            for win in (1, 2):
                e(f"v_add_u32 v{VRW+3*c2+win}, {win*2*SLOT}, v{VRW+3*c2}")
        e(f"s_lshl_b32 s{sT0}, s{sW}, 11")
        e(f"s_add_u32 s{sT0}, s{sT0}, {L_RED}")
        e(f"v_add_u32 v{VREDW}, s{sT0}, v{VL16}")
        e(f"v_lshrrev_b32 v4, 5, v{vL}")
        e(f"v_lshl_add_u32 v4, v4, 5, v5")
        e(f"v_lshlrev_b32 v4, 4, v4")
        e(f"v_lshl_add_u32 v1, v2, 10, v4")
        e(f"v_add_u32 v{VREDR}, {L_RED}, v1")
        e(f"s_lshr_b32 s{sT0}, s{sHP}, 2")
        e(f"s_lshl2_add_u32 s{sT0}, s{sTB}, s{sT0}")
        e(f"s_lshl_b32 s{sT0}, s{sT0}, 12")
        e(f"s_bfe_u32 s{sT1}, s{sHP}, 0x10001")
        e(f"s_lshl_b32 s{sT2}, s{sT1}, 8")
        e(f"s_lshl_b32 s{sT1}, s{sT1}, 10")
        e(f"s_add_u32 s{sT1}, s{sT1}, 2048")
        e(f"s_bitcmp1_b32 s{sHP}, 0")
        e(f"s_cselect_b32 s{sT1}, s{sT1}, s{sT2}")
        e(f"s_cselect_b64 vcc, -1, 0")
        e(f"s_add_u32 s{sT0}, s{sT0}, s{sT1}")
        e(f"v_cndmask_b32 v1, v1, v{VL16}, vcc")
        e(f"v_add_u32 v{VKVST}, s{sT0}, v1")
        e(f"s_and_b32 s{sT0}, s{sW}, 1")
        e(f"s_lshl_b32 s{sT0}, s{sT0}, 13")
        e(f"s_lshr_b32 s{sT1}, s{sW}, 1")
        e(f"s_lshl_b32 s{sT1}, s{sT1}, 12")
        e(f"s_add_u32 s{sT0}, s{sT0}, s{sT1}")
        e(f"s_add_u32 s{sT0}, s{sT0}, {L_Q}")
        e(f"v_lshl_add_u32 v4, v2, 3, v4")
        e(f"v_add_u32 v{VQW}, s{sT0}, v4")
        e(f"v_and_b32 v1, 3, v{vL}")
        e(f"v_lshlrev_b32 v{VPOLLA}, 6, v1")
        e(f"v_and_b32 v1, 7, v{vL}")
        e(f"v_mov_b32 v4, 0x3f803f80")
        e(f"v_cmp_eq_u32 vcc, 0, v1")
        e(f"v_mov_b32 v{IDX}, 0xdddddddd")
        e(f"s_nop 0")
        e(f"v_cndmask_b32 v{ONES}, 0, v4, vcc")
        e(f"v_cndmask_b32 v{ONES+1}, 0, v4, vcc")
        e(f"v_cmp_eq_u32 vcc, 4, v1")
        e(f"s_nop 1")
        e(f"v_cndmask_b32 v{ONES+2}, 0, v4, vcc")
        e(f"v_cndmask_b32 v{ONES+3}, 0, v4, vcc")
        for r in range(ACCO[0], ACCL[1] + 4):
            e(f"v_mov_b32 v{r}, 0")

    @staticmethod
    def slot_of(st):
        return (st + 4) % 6

    def q_dma_ops(self, st, part):
        e = self.e
        base = self.slot_of(st) * SLOT
        ops = []
        if part == "x":
            def pre():
                e(f"s_add_u32 s{sT0}, s{sROT}, {st}")
                e(f"s_and_b32 s{sT0}, s{sT0}, 15")
                e(f"s_add_u32 m0, s{sMX}, {base}")
                e(f"s_lshl_b32 s{sT0}, s{sT0}, 7")
            ops.append(pre)
            for j in range(4):
                ops.append(lambda j=j: self.vmem(f"buffer_load_dwordx4 v{VX+j}, {sr(SX,4)}, s{sT0} offen offset:{j*1024} lds", f"q{st}"))
        else:
            def pre():
                e(f"s_add_u32 s{sT0}, s{sROT}, {st}")
                e(f"s_and_b32 s{sT0}, s{sT0}, 15")
                e(f"s_add_u32 m0, s{sMW}, {base}")
                e(f"s_lshl_b32 s{sT0}, s{sT0}, 17")
            ops.append(pre)
            for j in range(2):
                ops.append(lambda j=j: self.vmem(f"buffer_load_dwordx4 v{VW+j}, {sr(SWQ,4)}, s{sT0} offen offset:{j*1024} lds", f"q{st}"))
        return ops
    def q_dma_x(self, st):
        for f in self.q_dma_ops(st, "x"): f()
    def q_dma_w(self, st):
        for f in self.q_dma_ops(st, "w"): f()

    def kv_proj(self):
        e = self.e
        self.cm("---- K/V projection: 16 tokens x 32 columns, k split over the waves")
        self.wait(vm="kvx")
        self.stamp("kvx")
        for ks in range(8):
            self.lds(f"ds_read_b128 {ar(4*ks,4)}, v{VKRX+(ks&1)} offset:{(ks>>1)*2048}", f"kx{ks}")
        for ks in range(8):
            if ks % 2 == 0: self.wait(vm=f"kvw{ks//2}")
            for T in range(2):
                for h in range(2):
                    self.lds(f"ds_read_b64_tr_b16 {ar(32+8*ks+4*T+2*h,2)}, v{VKRW+T} offset:{ks*2048+h*256}", f"kw{ks}")
        self.stamp("kvw")
        lv, lj = self.newlab("kvV"), self.newlab("kvj")
        e(f"s_bitcmp1_b32 s{sHP}, 0")
        e(f"s_cbranch_scc1 {lv}")
        save = (self.lgdone)
        for isv in range(2):
            self.lgdone = save
            if isv: self.lab(lv)
            for ks in range(8):
                self.wait(lg=f"kw{ks}")
                for T in range(2):
                    w, x = ar(32+8*ks+4*T, 4), ar(4*ks, 4)
                    a, b = (x, w) if isv else (w, x)
                    d = vr(KVACC+4*T, 4)
                    e(f"v_mfma_f32_16x16x32_bf16 {d}, {a}, {b}, {d if ks else 0}")
            if not isv: e(f"s_branch {lj}")
        self.lab(lj)
        e("s_nop 7")
        for T in range(2):
            self.lds(f"ds_write_b128 v{VREDW}, {vr(KVACC+4*T,4)} offset:{T*1024}")
        self.wait(lg="all")
        e("s_barrier")
        for st in range(2, self.c.look):
            self.q_dma_x(st); self.q_dma_w(st)
        ls = self.newlab("nored")
        e(f"s_cmp_lg_u32 s{sW}, 0")
        e(f"s_cbranch_scc1 {ls}")
        for p in range(4):
            for q in range(2):
                e(f"ds_read_b128 {vr(REDT+8*p+4*q,4)}, v{VREDR} offset:{p*2048+q*256}")
        for p in range(1, 4):
            e(f"s_waitcnt lgkmcnt({6-2*p})")
            for r in range(8):
                e(f"v_add_f32 v{REDT+r}, v{REDT+r}, v{REDT+8*p+r}")
        for r in range(8):
            e(f"v_mul_f32 v{REDT+r}, s{sKVEC}, v{REDT+r}")
        for r in range(4):
            e(f"v_cvt_pk_bf16_f32 v{REDT+8+r}, v{REDT+2*r}, v{REDT+2*r+1}")
        e(f"buffer_store_dwordx4 {vr(REDT+8,4)}, v{VKVST}, {sr(SKV,4)}, 0 offen sc1")
        e(f"v_max3_f32 v1, |v{REDT}|, |v{REDT+1}|, |v{REDT+2}|")
        e(f"v_max3_f32 v1, v1, |v{REDT+3}|, |v{REDT+4}|")
        e(f"v_max3_f32 v1, v1, |v{REDT+5}|, |v{REDT+6}|")
        e(f"v_max_f32 v1, v1, |v{REDT+7}|")
        e(f"v_cmp_lt_f32 vcc, {hex(f2u(2.0**40))}, v1")
        e(f"s_cmp_lg_u64 vcc, 0")
        e(f"s_cselect_b32 s{sUNSAFE}, 0x10001, 1")
        self.lab(ls)
        self.stamp("kvdone")

    def kv_publish(self):
        e = self.e
        ls = self.newlab("nopub")
        e(f"s_cmp_lg_u32 s{sW}, 0")
        e(f"s_cbranch_scc1 {ls}")
        e(f"v_mov_b32 v1, s{sUNSAFE}")
        e(f"s_and_b32 s{sT1}, s2, 3")
        e(f"s_lshl_b32 s{sT1}, s{sT1}, 6")
        e(f"s_mov_b64 exec, 1")
        e(f"buffer_atomic_add v1, off, {sr(SDBG,4)}, s{sT1} sc1")
        e(f"s_mov_b64 exec, -1")
        self.lab(ls)

    def kv_load(self, j, q):
        self.vmem(f"buffer_load_dwordx4 {ar(16*j+4*q,4)}, v{VL16}, {sr(SKV,4)}, s{sKVOFF} offen offset:{q*1024} sc1",
                  f"K{j}" if q < 2 else f"V{j}")
        if q == 3:
            self.e(f"s_add_u32 s{sKVOFF}, s{sKVOFF}, 4096")

    def spin_check(self, load, test, name):
        e = self.e
        lr, lb = self.newlab(name + "_retry"), self.newlab(name + "_ok")
        test()
        e("s_cmp_lg_u64 vcc, 0")
        e(f"s_cbranch_scc1 {lr}")
        self.lab(lb)
        main, self.out = self.out, []
        self.lab(lr)
        e(f"s_mov_b32 s{sSPIN}, 0")
        ll = self.newlab(name + "_loop")
        self.lab(ll)
        e("s_sleep 2")
        e(load)
        e(f"s_add_u32 s{sSPIN}, s{sSPIN}, 1")
        e(f"s_cmp_gt_u32 s{sSPIN}, {SPIN_MAX}")
        e("s_waitcnt vmcnt(0)")
        e(f"s_cbranch_scc1 {lb}")
        test()
        e("s_cmp_lg_u64 vcc, 0")
        e(f"s_cbranch_scc1 {ll}")
        e(f"s_branch {lb}")
        self.tail += self.out
        self.out = main

    def q_proj(self):
        e = self.e
        L = self.c.look
        self.cm("---- Q projection, 16 stages of 64 k")
        kvq = [(j, q) for j in range(3) for q in range(4)]
        poll = f"buffer_load_dword v{VPOLL}, v{VPOLLA}, {sr(SDBG,4)}, 0 offen sc1"
        for st in range(17):
            self.wait(vm=f"q{st}" if st < 16 else None, lg="all" if st > 0 else None)
            if st < 16: e("s_barrier")
            if st == L: self.kv_publish()
            mf, rd, dm = [], [], []
            if st > 0:
                b = (st - 1) & 1
                for kk in range(2):
                    for t4 in range(4):
                        for c2 in range(2):
                            d = vr(QACC + 4*(c2*4+t4), 4)
                            c = d if (st > 1 or kk) else "0"
                            mf.append(f"v_mfma_f32_16x16x32_bf16 {d}, {vr(WF+16*b+8*kk+4*c2,4)}, {vr(XF+32*b+16*kk+4*t4,4)}, {c}")
            if st < 16:
                b = st & 1
                sl = self.slot_of(st); win = sl >> 1; off = (sl & 1) * SLOT
                for kk in range(2):
                    for c2 in range(2):
                        for h in range(2):
                            rd.append(f"ds_read_b64_tr_b16 {vr(WF+16*b+8*kk+4*c2+2*h,2)}, v{VRW+3*c2+win} offset:{off+kk*4096+h*512}")
                    for t4 in range(4):
                        rd.append(f"ds_read_b128 {vr(XF+32*b+16*kk+4*t4,4)}, v{VRX+3*kk+win} offset:{off+t4*2048}")
            if st == 13 - L:
                dm.append(lambda: self.vmem(poll, "poll"))
            if st + L < 16:
                dm += self.q_dma_ops(st + L, "x") + self.q_dma_ops(st + L, "w")
            if st == 16 - L:
                def chk():
                    self.wait(vm="poll")
                    def test():
                        e(f"v_and_b32 v1, 0xffff, v{VPOLL}")
                        e(f"v_cmp_gt_u32 vcc, 64, v1")
                    self.spin_check(poll, test, "kv")
                    e(f"v_cmp_lt_u32 vcc, 0xffff, v{VPOLL}")
                    e(f"s_cmp_lg_u64 vcc, 0")
                    e(f"s_cselect_b32 s{sUNSAFE}, 1, {self.c.force_fb}")
                    self.stamp("kvready")
                dm.append(chk)
            if st >= 16 - L:
                n = 6 if st < 16 else len(kvq)
                for (j, q) in kvq[:n]:
                    dm.append(lambda j=j, q=q: self.kv_load(j, q))
                kvq = kvq[n:]
            n = max(len(mf), len(rd), 2 * len(dm))
            for i in range(n):
                if i < len(mf): e(mf[i])
                if i < len(rd): self.lds(rd[i])
                if i % 2 == 0 and i // 2 < len(dm): dm[i // 2]()
        self.stamp("qdone")
        self.cm("---- Q to LDS (bf16), addresses of the later phases")
        self.late_addresses()
        for c2 in range(2):
            for t4 in range(4):
                a = QACC + 4*(c2*4+t4)
                e(f"v_cvt_pk_bf16_f32 v{a}, v{a}, v{a+1}")
                e(f"v_cvt_pk_bf16_f32 v{a+1}, v{a+2}, v{a+3}")
                self.lds(f"ds_write_b64 v{VQW}, {vr(a,2)} offset:{(t4>>1)*2048 + c2*1024 + (t4&1)*256}")
        self.wait(lg="all")
        e("s_barrier")
        for s in range(4):
            e(f"s_add_u32 s{sT0}, s{sW}, {s}")
            e(f"s_and_b32 s{sT0}, s{sT0}, 3")
            e(f"s_lshl_b32 s{sT0}, s{sT0}, 11")
            e(f"s_add_u32 s{sT0}, s{sT0}, {L_Q}")
            e(f"v_add_u32 v{VQR}, s{sT0}, v{VL16}")
            for g in range(2):
                for a in range(2):
                    self.lds(f"ds_read_b128 {vr(Q0+16*s+8*g+4*a,4)}, v{VQR} offset:{g*8192+a*1024}", f"Q{s}{g}")

    def late_addresses(self):
        e = self.e
        e(f"v_and_b32 v5, 15, v{vL}")
        e(f"v_lshrrev_b32 v3, 4, v{vL}")
        e(f"s_mul_i32 s{sT0}, s{sW}, {XSLOT}")
        e(f"s_add_u32 s{sT0}, s{sT0}, {L_XFER[0]}")
        e(f"v_add_u32 v{VXW}, s{sT0}, v{VL16}")
        e(f"s_add_u32 s{sT0}, s{sW}, 1")
        e(f"s_and_b32 s{sT0}, s{sT0}, 3")
        e(f"s_mul_i32 s{sT0}, s{sT0}, {XSLOT}")
        e(f"s_add_u32 s{sT0}, s{sT0}, {L_XFER[0]}")
        e(f"v_add_u32 v{VXR}, s{sT0}, v{VL16}")
        e(f"v_lshrrev_b32 v2, 3, v{vL}")
        e(f"v_and_b32 v4, 7, v{vL}")
        e(f"v_lshlrev_b32 v1, 1, v3")
        e(f"v_xor_b32 v1, v1, v4")
        e(f"v_lshlrev_b32 v1, 4, v1")
        e(f"v_lshl_add_u32 v1, v2, 11, v1")
        e(f"s_lshl_b32 s{sT0}, s{sW}, 14")
        e(f"v_add_u32 v{VWO}, s{sT0}, v1")
        e(f"v_lshlrev_b32 v4, 4, v4")
        e(f"v_lshl_add_u32 v1, v2, 11, v4")
        e(f"s_lshl_b32 s{sT0}, s{sW}, 16")
        e(f"v_add_u32 v{VOUT}, s{sT0}, v1")
        e(f"v_mul_u32_u24 v1, 144, v2")
        e(f"s_mul_i32 s{sT1}, s{sW}, 4608")
        e(f"s_add_u32 s{sT1}, s{sT1}, {L_STAGE}")
        e(f"v_add3_u32 v{VOR}, v1, v4, s{sT1}")
        e(f"v_mul_u32_u24 v1, 144, v5")
        e(f"v_lshl_add_u32 v1, v3, 3, v1")
        e(f"v_add_u32 v{VOW}, s{sT1}, v1")
        e(f"v_bfe_u32 v1, v{vL}, 1, 4")
        e(f"v_and_b32 v2, 1, v{vL}")
        e(f"v_lshlrev_b32 v2, 9, v2")
        e(f"v_lshl_add_u32 v1, v1, 11, v2")
        e(f"v_add_u32 v{VGATE}, s{sT0}, v1")
        e(f"s_add_u32 s{sT0}, s{sW}, 3")
        e(f"s_and_b32 s{sT0}, s{sT0}, 3")
        e(f"s_lshl_b32 s{sT0}, s{sT0}, 16")
        e(f"s_lshl_b32 s{sT1}, s{sHP}, 11")
        e(f"s_add_u32 s{sT0}, s{sT0}, s{sT1}")
        e(f"v_and_b32 v2, 1, v3")
        e(f"v_lshrrev_b32 v4, 1, v3")
        e(f"v_lshlrev_b32 v1, 4, v5")
        e(f"v_lshl_add_u32 v1, v2, 10, v1")
        e(f"v_lshl_add_u32 v1, v4, 8, v1")
        e(f"v_add_u32 v{VOST}, s{sT0}, v1")
        e(f"v_lshrrev_b32 v1, 2, v5")
        e(f"v_lshl_add_u32 v1, v2, 2, v1")
        e(f"v_lshl_add_u32 v1, v4, 4, v1")
        e(f"v_lshrrev_b32 v6, 3, v5")
        e(f"v_lshl_add_u32 v6, v2, 1, v6")
        e(f"v_and_b32 v7, 3, v5")
        e(f"v_lshlrev_b32 v7, 3, v7")
        e(f"v_lshl_add_u32 v7, v6, 5, v7")
        e(f"v_lshl_add_u32 v{VTR}, v1, 7, v7")
        for T in range(1, 4):
            e(f"v_xor_b32 v{VTR+T}, {32*T}, v{VTR}")
        for T in range(4):
            e(f"v_add_u32 v{VTR+4+T}, 0x10000, v{VTR+T}")
        for r in range(4, 8):
            e(f"v_mov_b32 v{r}, -1")

    @staticmethod
    def ofrag(f):
        if f >= 32: return ar(4 * (f - 32), 4)
        if f < 4: return vr(ACCO[0] + 4 * f, 4)
        f -= 4
        if f < 14: return vr(Q0 + 4 * f, 4)
        return vr(200 + 4 * (f - 14), 4)

    def o_load(self, f):
        if f % 4 == 0:
            self.e(f"s_lshl_b32 s{sT2}, s{sW}, 16")
            if f: self.e(f"s_add_u32 s{sT2}, s{sT2}, {f*1024}")
        self.vmem(f"buffer_load_dwordx4 {self.ofrag(f)}, v{VL16}, {sr(SO,4)}, s{sT2} offen offset:{(f%4)*1024} sc1", f"O{f>>1}")

    def wo_dma(self, p):
        head = 2 * (p & 15) + (p >> 4)
        return [lambda: self.e(f"s_add_u32 m0, s{sWO0}, {p*4096}"),
                lambda: self.e(f"s_mov_b32 s{sT1}, {head << 16}"),
                lambda: self.vmem(f"buffer_load_dwordx4 v{VWO}, {sr(SWO,4)}, s{sT1} offen lds", "wo_early" if p < 26 else "wo_late")]

    def normalise(self, g):
        e = self.e
        O, Lr = ACCO[g], ACCL[g]
        ops = []
        def chk():
            lf, lb = self.newlab("fb"), self.newlab("fbret")
            e(f"v_subrev_u32 v1, 0x3f800000, v{Lr}")
            e(f"v_cmp_lt_u32 vcc, {hex(64 << 23)}, v1")
            e(f"s_or_b32 vcc_lo, vcc_lo, s{sUNSAFE}")
            e(f"s_cmp_lg_u64 vcc, 0")
            e(f"s_cbranch_scc1 {lf}")
            self.lab(lb)
            e(f"v_rcp_f32 v{VRCP}, v{Lr}")
            main, self.out = self.out, []
            self.lab(lf)
            self.fallback(g)
            e(f"s_branch {lb}")
            self.tail += self.out
            self.out = main
        ops.append(chk)
        ops.append(lambda: e("s_nop 0"))
        for r in range(16):
            ops.append(lambda r=r: e(f"v_mul_f32 v{O+r}, v{VRCP}, v{O+r}"))
        for r in range(8):
            ops.append(lambda r=r: e(f"v_cvt_pk_bf16_f32 v{VPK+r}, v{O+2*r}, v{O+2*r+1}"))
        for r in range(8):
            ops.append(lambda r=r: e(f"v_min_u32 v{VPK+r}, -2, v{VPK+r}"))
        ops.append(lambda: e(f"s_mov_b32 s{sT3}, {g*32768}"))
        for a in range(2):
            ops.append(lambda a=a: self.vmem(f"buffer_store_dwordx4 {vr(VPK+4*a,4)}, v{VOST}, {sr(SO,4)}, s{sT3} offen offset:{a*512} sc1", f"pub{g}"))
        return ops

    def fallback(self, g):
        e = self.e
        if g == 0:
            K, V, S, C, M = (lambda a, n: vr(200+a, n)), (lambda a, n: vr(208+a, n)), 216, 232, 248
        else:
            K, V, S, C, M = (lambda a, n: ar(a, n)), (lambda a, n: ar(8+a, n)), 48, 64, 80
        Q = Q0 + 48 + 8 * g
        O, Lr = ACCO[g], ACCL[g]
        self.cm("true-max path, pass 1: row maxima")
        e("s_nop 15")
        e(f"v_mov_b32 v{M}, 0xff800000")
        e(f"s_mov_b32 s{sLOOP}, 0")
        l1 = self.newlab("fbmax")
        self.lab(l1)
        for a in range(2):
            e(f"buffer_load_dwordx4 {K(4*a,4)}, v{VL16}, {sr(SKV,4)}, s{sLOOP} offen offset:{a*1024} sc1")
        e("s_waitcnt vmcnt(0)")
        e(f"v_mfma_f32_32x32x16_bf16 {vr(S,16)}, {K(0,4)}, {vr(Q,4)}, 0")
        e(f"v_mfma_f32_32x32x16_bf16 {vr(S,16)}, {K(4,4)}, {vr(Q+4,4)}, {vr(S,16)}")
        e("s_nop 15")
        for r in range(0, 16, 2):
            e(f"v_max3_f32 v{M}, v{M}, v{S+r}, v{S+r+1}")
        e(f"s_add_u32 s{sLOOP}, s{sLOOP}, 4096")
        e(f"s_cmp_lt_u32 s{sLOOP}, 0x40000")
        e(f"s_cbranch_scc1 {l1}")
        e(f"v_mov_b32 v{M+1}, v{M}")
        e("s_nop 1")
        e(f"v_permlane32_swap_b32 v{M}, v{M+1}")
        e("s_nop 1")
        e(f"v_max_f32 v{M}, v{M}, v{M+1}")
        for r in range(16):
            e(f"v_sub_f32 v{C+r}, 0, v{M}")
            e(f"v_mov_b32 v{O+r}, 0")
        for r in range(4):
            e(f"v_mov_b32 v{Lr+r}, 0")
        self.cm("pass 2")
        e(f"s_mov_b32 s{sLOOP}, 0")
        l2 = self.newlab("fbsum")
        self.lab(l2)
        for a in range(2):
            e(f"buffer_load_dwordx4 {K(4*a,4)}, v{VL16}, {sr(SKV,4)}, s{sLOOP} offen offset:{a*1024} sc1")
        for a in range(2):
            e(f"buffer_load_dwordx4 {V(4*a,4)}, v{VL16}, {sr(SKV,4)}, s{sLOOP} offen offset:{2048+a*1024} sc1")
        e("s_waitcnt vmcnt(0)")
        e(f"v_mfma_f32_32x32x16_bf16 {vr(S,16)}, {K(0,4)}, {vr(Q,4)}, {vr(C,16)}")
        e(f"v_mfma_f32_32x32x16_bf16 {vr(S,16)}, {K(4,4)}, {vr(Q+4,4)}, {vr(S,16)}")
        e("s_nop 15")
        for r in range(16):
            e(f"v_exp_f32 v{S+r}, v{S+r}")
        e("s_nop 1")
        for h in range(2):
            e(f"v_smfmac_f32_32x32x32_bf16 {vr(O,16)}, {V(4*h,4)}, {vr(S+8*h,8)}, v{IDX}")
            e(f"v_smfmac_f32_16x16x64_bf16 {vr(Lr,4)}, {vr(ONES,4)}, {vr(S+8*h,8)}, v{IDX}")
        e("s_nop 15")
        e(f"s_add_u32 s{sLOOP}, s{sLOOP}, 4096")
        e(f"s_cmp_lt_u32 s{sLOOP}, 0x40000")
        e(f"s_cbranch_scc1 {l2}")

    def gate_load(self, g):
        return f"buffer_load_dword v{VPOLL}, v{VGATE}, {sr(SO,4)}, s{sT3} offen sc1"

    def gate_issue(self, g):
        self.e(f"s_mov_b32 s{sT3}, {g*32768}")
        self.vmem(self.gate_load(g), f"gate{g}")

    def gate_check(self, g):
        self.wait(vm=f"gate{g}")
        self.spin_check(self.gate_load(g), lambda: self.e(f"v_cmp_eq_u32 vcc, -1, v{VPOLL}"), f"gate{g}_")

    def attention(self):
        e = self.e
        c = self.c
        order = []
        for i in range(10): order += [(0, 0, i), (1, 0, i)]
        order += [(0,0,10),(0,0,11),(1,0,10),(0,0,12),(0,0,13),(1,0,11),(0,0,14),(0,0,15),(1,0,12),(1,0,13),(1,0,14),(1,0,15)]
        for s in range(1, 4):
            for g in range(2):
                order += [(g, s, i) for i in range(16)]
        assert len(order) == 128
        X = {}
        def at(n, pos, *fns):
            X.setdefault((n, pos), []).extend(fns)
        def SB(n): return S0 + 16 * (n % 3)
        def QK(n, a):
            g, s, i = order[n]
            d = vr(SB(n), 16)
            e(f"v_mfma_f32_32x32x16_bf16 {d}, {ar(16*i+4*a,4)}, {vr(Q0+16*s+8*g+4*a,4)}, {d if a else 0}")
        def PV(n, h):
            g, s, i = order[n]
            e(f"v_smfmac_f32_32x32x32_bf16 {vr(ACCO[g],16)}, {ar(16*i+8+4*h,4)}, {vr(SB(n)+8*h,8)}, v{IDX}")
        def RS(n, h):
            g, s, i = order[n]
            e(f"v_smfmac_f32_16x16x64_bf16 {vr(ACCL[g],4)}, {vr(ONES,4)}, {vr(SB(n)+8*h,8)}, v{IDX}")
        def EX(n, r):
            e(f"v_exp_f32 v{SB(n)+r}, v{SB(n)+r}")
        kvq = [(j, q) for j in range(3, 16) for q in range(4)]
        n = 0
        while kvq:
            for pos in (2, 3, 4, 5)[:c.kvrate]:
                if kvq:
                    j, q = kvq.pop(0)
                    at(n, pos, lambda j=j, q=q: self.kv_load(j, q))
            n += 1
        seen = set()
        for n in range(32):
            g, s, i = order[n]
            if i in seen: continue
            seen.add(i)
            if n >= 2: at(n - 2, 5, lambda i=i: self.wait(vm=f"K{i}"))
            at(n, 3, lambda i=i: self.wait(vm=f"V{i}"))
        def xfer(g, nlast, pre_barrier=(), post_barrier=()):
            off = L_XFER[g] - L_XFER[0]
            wr = [lambda q=q: self.lds(f"ds_write_b128 v{VXW}, {vr(ACCO[g]+4*q,4)} offset:{off+q*1024}") for q in range(4)]
            wr.append(lambda: self.lds(f"ds_write_b128 v{VXW}, {vr(ACCL[g],4)} offset:{off+4096}"))
            rd = [lambda q=q: self.lds(f"ds_read_b128 {vr(ACCO[g]+4*q,4)}, v{VXR} offset:{off+q*1024}") for q in range(4)]
            rd.append(lambda: self.lds(f"ds_read_b128 {vr(ACCL[g],4)}, v{VXR} offset:{off+4096}"))
            for q in range(5): at(nlast + 2, 1 + q, wr[q])
            at(nlast + 3, 2, *pre_barrier)
            at(nlast + 3, 3, lambda: self.wait(lg="all"), lambda: e("s_barrier"))
            at(nlast + 3, 4, rd[0], *post_barrier); at(nlast + 3, 5, rd[1])
            at(nlast + 4, 0, rd[2]); at(nlast + 4, 1, rd[3]); at(nlast + 4, 2, rd[4])
            at(nlast + 5, 3, lambda: self.wait(lg="all"))
        def cnt2_add():
            ls = self.newlab("noc2")
            e(f"s_cmp_lg_u32 s{sW}, 0")
            e(f"s_cbranch_scc1 {ls}")
            e(f"v_mov_b32 v1, 1")
            e(f"s_lshl_b32 s{sT1}, s{sTB}, 4")
            e(f"s_mov_b64 exec, 1")
            e(f"buffer_atomic_add v1, off, {sr(SDBG,4)}, s{sT1} offset:4 sc1")
            e(f"s_mov_b64 exec, -1")
            e(f"s_nop 3")
            self.lab(ls)
        xfer(0, 27)
        xfer(1, 31)
        xfer(0, 47, pre_barrier=[lambda: self.wait(vm="clear")], post_barrier=[cnt2_add])
        xfer(1, 63)
        xfer(0, 79)
        xfer(1, 95, pre_barrier=[lambda: self.wait(vm="wo_early")])
        for k in range(4):
            g, a = k >> 1, k & 1
            at(38 + k, 2, lambda g=g: e(f"s_mov_b32 s{sT3}, {g*32768}"))
            at(38 + k, 3, lambda a=a: self.vmem(f"buffer_store_dwordx4 v[4:7], v{VOST}, {sr(SO,4)}, s{sT3} offen offset:{a*512} sc1", "clear"))
        free = [n for n in range(42, 96) if n % 16 >= 6]
        for p in range(26):
            m, so, ld = self.wo_dma(p)
            at(free[p], 2, m, so); at(free[p], 3, ld)
        for p in range(26, 32):
            m, so, ld = self.wo_dma(p)
            at(102 + p - 26, 2, m, so); at(102 + p - 26, 3, ld)
        c2load = f"buffer_load_dword v{VPOLL}, off, {sr(SDBG,4)}, s{sT2} offset:4 sc1"
        at(101, 2, lambda: e(f"s_lshl_b32 s{sT2}, s{sTB}, 4"))
        at(101, 3, lambda: self.vmem(c2load, "c2"))
        def c2chk():
            self.wait(vm="c2")
            self.spin_check(c2load, lambda: e(f"v_cmp_gt_u32 vcc, 16, v{VPOLL}"), "c2_")
        at(109, 2, c2chk)
        ops = self.normalise(0)
        at(113, 1, *ops[:2]); at(113, 2, *ops[2:10]); at(113, 3, *ops[10:18]); at(113, 4, *ops[18:26]); at(113, 5, *ops[26:35])
        at(114, 0, ops[35]); at(114, 1, ops[36])
        at(114, 2, lambda: self.stamp("pubA"))
        at(116, 2, lambda: self.wait(vm="wo_late")); at(116, 3, lambda: e("s_barrier"))
        at(112 + c.gateA, 2, lambda: self.gate_issue(0))
        at(112 + c.gateAchk, 1, lambda: self.gate_check(0), lambda: self.stamp("gateA"))
        self.nextO = 0
        def oload():
            self.o_load(self.nextO); self.nextO += 1
        for n in range(112 + c.gateAchk, 128):
            for pos in (2, 3, 4): at(n, pos, oload)
        self.cm("---- attention")
        self.wait(vm="K0", lg="Q00")
        QK(0, 0); QK(0, 1)
        self.stamp("attn")
        self.wait(lg="Q01")
        e("s_nop 10")
        def extras(n, pos):
            for f in X.pop((n, pos), []): f()
        for n in range(128):
            self.cm(f"slot {n} {order[n]}")
            if n + 1 < 128: QK(n + 1, 0)
            extras(n, 0)
            for r in (0, 1, 2): EX(n, r)
            if n + 1 < 128: QK(n + 1, 1)
            extras(n, 1)
            for r in (3, 4, 5): EX(n, r)
            if n: PV(n - 1, 1)
            extras(n, 2)
            for r in (6, 7, 8): EX(n, r)
            if n: RS(n - 1, 1)
            extras(n, 3)
            for r in (9, 10): EX(n, r)
            PV(n, 0)
            extras(n, 4)
            for r in (11, 12, 13): EX(n, r)
            RS(n, 0)
            extras(n, 5)
            for r in (14, 15): EX(n, r)
        assert not X, X.keys()
        self.wo_reads(0)[0](); self.wo_reads(0)[1]()
        RS(127, 1); PV(127, 1)
        self.stamp("T")
        for f in self.wo_reads(0)[2:]: f()
        e("s_nop 5")
        for f in self.normalise(1): f()
        self.stamp("pubB")

    def wo_reads(self, p):
        b = 128 + 16 * (p & 1)
        return [lambda T=T, h=h: self.lds(f"ds_read_b64_tr_b16 {ar(b+4*T+2*h,2)}, v{VTR+4*(p>>4)+T} offset:{(p&15)*4096+h*1024}", f"W{p}")
                for T in range(4) for h in range(2)]

    def o_proj(self):
        e = self.e
        c = self.c
        self.cm("---- output projection")
        for p in range(32):
            ex = []
            if p == c.gateB: ex.append(lambda: self.gate_issue(1))
            if p == c.gateBchk: ex.append(lambda: (self.gate_check(1), self.stamp("gateB")))
            lim = 32 if p < c.gateBchk else 64
            nl = min(lim - self.nextO, 4)
            for k in range(nl):
                ex.append(lambda f=self.nextO + k: self.o_load(f))
            self.nextO += nl
            rd = self.wo_reads(p + 1) if p < 31 else []
            assert self.vm.count(f"O{p}") == 2
            self.wait(vm=f"O{p}", lg=f"W{p}")
            b = 128 + 16 * (p & 1)
            i = 0
            for T in range(4):
                for u in range(2):
                    d = vr(QACC + 4 * (2 * T + u), 4)
                    e(f"v_mfma_f32_16x16x32_bf16 {d}, {ar(b+4*T,4)}, {self.ofrag(2*p+u)}, {d if p else 0}")
                    if i < len(rd): rd[i]()
                    if i < len(ex): ex[i]()
                    i += 1
        self.stamp("oproj")
        e("s_nop 7")
        lslow, lback = "L_slow", "L_epi"
        e(f"v_cmp_u_f32 vcc, v{QACC}, v{QACC+4}")
        if c.force_slow:
            e(f"s_branch {lslow}")
        e("s_cmp_lg_u64 vcc, 0")
        e(f"s_cbranch_scc1 {lslow}")
        self.lab(lback)
        for T in range(4):
            for u in range(2):
                a = QACC + 4 * (2 * T + u)
                e(f"v_cvt_pk_bf16_f32 v{a}, v{a}, v{a+1}")
                e(f"v_cvt_pk_bf16_f32 v{a+1}, v{a+2}, v{a+3}")
                e(f"ds_write_b64 v{VOW}, {vr(a,2)} offset:{u*16*144 + T*32}")
        e("s_waitcnt lgkmcnt(0)")
        for i in range(4):
            e(f"ds_read_b128 {vr(80+4*i,4)}, v{VOR} offset:{i*8*144}")
        for i in range(4):
            e(f"s_mov_b32 s{sT0}, {i*8*2048}")
            e(f"s_waitcnt lgkmcnt({3-i})")
            e(f"buffer_store_dwordx4 {vr(80+4*i,4)}, v{VOUT}, {sr(SOUT,4)}, s{sT0} offen")
        main, self.out = self.out, []
        self.lab(lslow)
        e("s_waitcnt vmcnt(0) lgkmcnt(0)")
        for r in range(32): e(f"v_mov_b32 v{QACC+r}, 0")
        e(f"s_lshl_b32 s{sT2}, s{sW}, 16")
        e(f"s_mov_b32 s{sLOOP}, 0")
        e(f"s_mov_b32 s{sSPIN}, 0")
        self.lab("L_slow_loop")
        for u in range(2):
            e(f"buffer_load_dwordx4 {vr(80+4*u,4)}, v{VL16}, {sr(SO,4)}, s{sT2} offen offset:{u*1024} sc1")
        e(f"s_add_u32 s{sSPIN}, s{sSPIN}, 1")
        e("s_waitcnt vmcnt(0)")
        e("v_max3_u32 v1, v80, v81, v82")
        e("v_max3_u32 v1, v1, v83, v84")
        e("v_max3_u32 v1, v1, v85, v86")
        e("v_max_u32 v1, v1, v87")
        e("v_cmp_eq_u32 vcc, -1, v1")
        e(f"s_cmp_gt_u32 s{sSPIN}, {SPIN_MAX}")
        e("s_cbranch_scc1 L_slow_go")
        e("s_cmp_lg_u64 vcc, 0")
        e("s_cbranch_scc1 L_slow_loop")
        self.lab("L_slow_go")
        for T in range(4):
            for h in range(2):
                e(f"ds_read_b64_tr_b16 {ar(128+4*T+2*h,2)}, v{VTR+T} offset:{h*1024}")
        e("s_waitcnt lgkmcnt(0)")
        for T in range(4):
            e(f"v_add_u32 v{VTR+T}, 4096, v{VTR+T}")
            for u in range(2):
                d = vr(QACC + 4 * (2 * T + u), 4)
                e(f"v_mfma_f32_16x16x32_bf16 {d}, {ar(128+4*T,4)}, {vr(80+4*u,4)}, {d}")
        e("s_nop 7")
        e(f"s_add_u32 s{sT2}, s{sT2}, 2048")
        e(f"s_add_u32 s{sLOOP}, s{sLOOP}, 1")
        e(f"s_cmp_lt_u32 s{sLOOP}, 32")
        e("s_cbranch_scc1 L_slow_loop")
        e(f"s_branch {lback}")
        self.tail += self.out
        self.out = main

    def finish(self):
        e = self.e
        if self.c.stamps:
            e("s_waitcnt vmcnt(0)")
            self.stamp("end")
            e("s_waitcnt lgkmcnt(0)")
            self.srd(SO, sPTR + 14, WS_STAMP, 0x40000)
            e(f"s_lshl2_add_u32 s{sT0}, s2, s{sW}")
            e(f"s_lshl_b32 s{sT0}, s{sT0}, 7")
            e("s_mov_b64 exec, 1")
            for i in range(self.nstamp):
                e(f"v_mov_b32 v1, s{sSTAMP+2*i}")
                e(f"buffer_store_dword v1, off, {sr(SO,4)}, s{sT0} offset:{4*i}")
                e("s_nop 1")
            if self.c.probe >= 0:
                e(f"s_add_u32 s{sT1}, s{sSTAMP+2*self.c.probe}, 10000")
                self.lab("L_probe")
                e(f"s_memrealtime {sr(sEX,2)}")
                e("s_waitcnt lgkmcnt(0)")
                e(f"s_sub_u32 s{sT0}, s{sEX}, s{sT1}")
                e(f"s_cmp_lt_i32 s{sT0}, 0")
                e("s_cbranch_scc1 L_probe")
        self.lab("L_end")
        e("s_endpgm")

    def build(self):
        self.prologue()
        self.kv_proj()
        self.q_proj()
        self.attention()
        self.o_proj()
        self.finish()
        head = open("cdna_kernels/" + NAME + ".s.ref").read().split("; Override launch geometry")[0]
        txt = head + f"""; @launch grid=(256,1,1) block=(256,1,1) lds=163840
; Fused multi-query attention: K/V projection -> (grid hand-off) -> Q projection -> attention with K/V resident
; in registers -> (token-block hand-off) -> output projection.  Generated by a script (hand-written schedule).
.amdgcn_target "amdgcn-amd-amdhsa--gfx950"
.text
.globl {NAME}_kernel
.p2align 8
.type {NAME}_kernel,@function
{NAME}_kernel:
""" + "\n".join(self.out) + "\n" + "\n".join(self.tail) + f"""
.section .rodata,"a"
.p2align 6
.amdhsa_kernel {NAME}_kernel
  .amdhsa_next_free_vgpr 512
  .amdhsa_next_free_sgpr 102
  .amdhsa_accum_offset 256
  .amdhsa_group_segment_fixed_size 0
  .amdhsa_kernarg_size 64
  .amdhsa_user_sgpr_count 2
  .amdhsa_user_sgpr_kernarg_segment_ptr 1
  .amdhsa_system_sgpr_workgroup_id_x 1
.end_amdhsa_kernel
"""
        if self.c.stamps:
            txt = "; stamps: " + " ".join(self.stampnames) + "\n" + txt
        return txt


if __name__ == "__main__":
    cfg = Cfg()
    for a in sys.argv[2:]:
        k, v = a.split("=")
        assert hasattr(cfg, k), k
        setattr(cfg, k, int(v))
    open(sys.argv[1], "w").write(Gen(cfg).build())
```
